```python
import torch

def _softmax(x, axis=-1):
    return torch.softmax(x, dim=axis)

def _gelu(x):
    return torch.nn.functional.gelu(x, approximate='tanh')

def _silu(x):
    return torch.nn.functional.silu(x)

def _sigmoid(x):
    return torch.sigmoid(x)

def _layernorm(x, axis=-1, eps=1e-05):
    m = x.mean(dim=axis, keepdim=True)
    v = x.var(dim=axis, keepdim=True, unbiased=False)
    return (x - m) / torch.sqrt(v + eps)

def _scatter_add(tgt, idx, src, axis=0):
    return tgt.clone().index_add_(axis, idx, src)

def _segment_sum(src, seg, n):
    out = torch.zeros((n,) + src.shape[1:], dtype=src.dtype)
    return out.index_add_(0, seg, src)

def _pad(x, pw):
    flat = tuple((v for pair in reversed(pw) for v in pair))
    return torch.nn.functional.pad(x, flat)
kernel_name = 'adaLN_cond__gqa_block_cached__glu_gated_bilinear__prompt'

def setup_inputs():

    _w = lambda a: (lambda t: t.to(torch.bfloat16) if t.is_floating_point() else t)(torch.as_tensor(a))

    def _A_setup():
        B, Sq, D = (1, 2048, 448)
        Hq, Hkv, Sk, Dh = (16, 8, 2048, 256)
        assert Hq % Hkv == 0, (Hq, Hkv)
        return {'x': _w((lambda *s: torch.randn(*s, dtype=torch.bfloat16) * 0.05)(B, Sq, D)), 'k_cache': _w((lambda *s: torch.randn(*s, dtype=torch.bfloat16) * 0.8)(B, Hkv, Sk, Dh)), 'v_cache': _w((lambda *s: torch.randn(*s, dtype=torch.bfloat16) * 3.2)(B, Hkv, Sk, Dh)), 'wq': _w((lambda *s: torch.randn(*s, dtype=torch.bfloat16) * 0.8)(D, Hq * Dh) * D ** (-0.5)), 'wo': _w((lambda *s: torch.randn(*s, dtype=torch.bfloat16) * 3.2)(Hq * Dh, D) * (Hq * Dh) ** (-0.5))}
    _A_in = _A_setup()

    def _B_setup():
        B, S, D, F = (1, 2048, 448, 1792)
        return {'x': _w((lambda *s: torch.randn(*s, dtype=torch.bfloat16) * 0.05)(B, S, D)), 'w_gate': _w((lambda *s: torch.randn(*s, dtype=torch.bfloat16) * 3.2)(D, F) * D ** (-0.5)), 'w_up': _w((lambda *s: torch.randn(*s, dtype=torch.bfloat16) * 3.2)(D, F) * D ** (-0.5)), 'w_down': _w((lambda *s: torch.randn(*s, dtype=torch.bfloat16) * 3.2)(F, D) * F ** (-0.5))}
    _B_in = _B_setup()
    return {'A_x': _A_in['x'], 'A_k_cache': _A_in['k_cache'], 'A_v_cache': _A_in['v_cache'], 'A_wq': _A_in['wq'], 'A_wo': _A_in['wo'], 'B_x': _B_in['x'], 'B_w_gate': _B_in['w_gate'], 'B_w_up': _B_in['w_up'], 'B_w_down': _B_in['w_down'], 'c': _w((lambda *s: torch.randn(*s, dtype=torch.bfloat16) * 0.4)(1, 448) * 8.0), 'w_mod': _w((lambda *s: torch.randn(*s, dtype=torch.bfloat16) * 0.4)(448, 6 * 448) * 448 ** (-0.5) * 8.0)}

def reference(A_x, A_k_cache, A_v_cache, A_wq, A_wo, B_x, B_w_gate, B_w_up, B_w_down, c, w_mod):

    def _A_ref(x, k_cache, v_cache, wq, wo):
        B, Sq, D = x.shape
        Hq, Dh = (16, 256)
        Hkv = k_cache.shape[1]
        rep = Hq // Hkv
        q = (lambda x, *d: x.permute(*d))((x @ wq).reshape(B, Sq, Hq, Dh), 0, 2, 1, 3)
        k = (lambda x, n, axis: torch.repeat_interleave(x, n, dim=axis))(k_cache, rep, axis=1)
        v = (lambda x, n, axis: torch.repeat_interleave(x, n, dim=axis))(v_cache, rep, axis=1)
        scores = torch.einsum('bhqd,bhkd->bhqk', q, k) * Dh ** (-0.5)
        p = _softmax(scores, axis=-1)
        o = torch.einsum('bhqk,bhkd->bhqd', p, v)
        return (lambda x, *d: x.permute(*d))(o, 0, 2, 1, 3).reshape(B, Sq, Hq * Dh) @ wo

    def _B_ref(x, w_gate, w_up, w_down):
        g = torch.einsum('bsd,df->bsf', x, w_gate)
        u = torch.einsum('bsd,df->bsf', x, w_up)
        h = g * u
        return torch.einsum('bsf,fd->bsd', h, w_down)
    x = A_x
    mod = (_silu(c) @ w_mod).reshape(c.shape[0], 6, 1, -1)
    sa, ca, ga, sb, cb, gb = (mod[:, 0].clone(), mod[:, 1].clone(), mod[:, 2].clone(), mod[:, 3].clone(), mod[:, 4].clone(), mod[:, 5].clone())
    h = _layernorm(x, axis=-1) * (1 + ca) + sa
    x = x + ga * _A_ref(h, A_k_cache, A_v_cache, A_wq, A_wo)
    h = _layernorm(x, axis=-1) * (1 + cb) + sb
    x = x + gb * _B_ref(h, B_w_gate, B_w_up, B_w_down)
    return x
```

```python
import re

REG_RE = re.compile(r'(?<![\w.])([vas])(?:(\d+)|\[(\d+):(\d+)\])(?![\w])')


def regs_of(tok):
    out = []
    for m in REG_RE.finditer(tok):
        k = m.group(1)
        if m.group(2) is not None:
            out.append((k, int(m.group(2))))
        else:
            out += [(k, i) for i in range(int(m.group(3)), int(m.group(4)) + 1)]
    t = tok.strip()
    if t in ('vcc', 'vcc_lo', 'vcc_hi'):
        out.append(('vcc', 0))
    if t in ('exec', 'exec_lo', 'exec_hi'):
        out.append(('exec', 0))
    if t == 'm0':
        out.append(('m0', 0))
    return out


def split_ops(s):
    ops, depth, cur = [], 0, ''
    for ch in s:
        if ch in '[(':
            depth += 1
        if ch in '])':
            depth -= 1
        if ch == ',' and depth == 0:
            ops.append(cur.strip())
            cur = ''
        else:
            cur += ch
    if cur.strip():
        ops.append(cur.strip())
    return ops


TRANS = ('v_exp_f32', 'v_log_f32', 'v_rcp_f32', 'v_rsq_f32', 'v_sqrt_f32', 'v_sin_f32', 'v_cos_f32')
NODST_S = ('s_cmp', 's_waitcnt', 's_barrier', 's_branch', 's_cbranch', 's_nop', 's_setprio', 's_endpgm',
           's_sleep', 's_bitcmp', 's_setreg', 's_sethalt')


class Ins:
    __slots__ = ('text', 'op', 'rd', 'wr', 'kind', 'srcc', 'srcab', 'label', 'passes', 'tag', 'data')

    def __init__(self, text, tag=None):
        self.text = text
        self.tag = tag
        self.label = None
        self.srcc = []
        self.srcab = []
        self.passes = 0
        self.data = []
        t = text.split(';')[0].strip()
        if t.endswith(':'):
            self.label = t[:-1]
            self.op = ''
            self.rd, self.wr, self.kind = [], [], 'label'
            return
        if t.startswith('.') or not t:
            self.op = ''
            self.rd, self.wr, self.kind = [], [], 'dir'
            return
        parts = t.split(None, 1)
        op = parts[0]
        self.op = op
        rest = parts[1] if len(parts) > 1 else ''
        ops = split_ops(rest)
        R = [regs_of(o.split(' ')[0]) if not o.startswith('abs(') and not o.startswith('-abs(') else regs_of(o) for o in ops]
        flat = lambda L: [r for x in L for r in x]
        rd, wr = [], []
        if op.startswith('v_mfma'):
            self.kind = 'mfma'
            wr = R[0]
            self.srcab = R[1] + R[2]
            self.srcc = R[3]
            rd = self.srcab + self.srcc
            self.passes = 8 if '32x32x16' in op else 4
        elif op.startswith('ds_'):
            self.kind = 'lds'
            if op.startswith('ds_read') or op.startswith('ds_bpermute') or op.startswith('ds_swizzle') or op.startswith('ds_permute') or '_rtn' in op:
                wr = R[0]
                rd = flat(R[1:])
            else:
                rd = flat(R)
                self.data = flat(R[1:])
        elif op.startswith('buffer_') or op.startswith('global_'):
            self.kind = 'vmem'
            is_lds = re.search(r'\blds\b', rest) is not None or '_lds_' in op
            if op in ('buffer_inv', 'buffer_wbl2'):
                pass
            elif is_lds:
                rd = flat(R) + [('m0', 0)]
                self.kind = 'dma'
            elif 'load' in op:
                wr = R[0]
                rd = flat(R[1:])
            elif op.startswith('buffer_store'):
                rd = flat(R)
                self.data = R[0]
            elif op.startswith('global_store'):
                rd = flat(R)
                self.data = R[1]
            else:
                rd = flat(R)
                if 'sc0' in rest:
                    wr = R[0]
        elif op.startswith('s_load') or op.startswith('s_memtime') or op.startswith('s_memrealtime') or op.startswith('s_buffer_load'):
            self.kind = 'smem'
            wr = R[0]
            rd = flat(R[1:])
        elif op.startswith('s_'):
            self.kind = 'salu'
            if op.startswith(NODST_S):
                rd = flat(R)
            else:
                wr = R[0]
                rd = flat(R[1:])
                if 'saveexec' in op:
                    wr = wr + [('exec', 0)]
                if op in ('s_addk_i32', 's_mulk_i32'):
                    rd = rd + R[0]
        elif op.startswith('v_'):
            self.kind = 'valu'
            if op.startswith('v_permlane') and 'swap' in op:
                wr = R[0] + R[1]
                rd = R[0] + R[1]
                self.kind = 'permlane'
            elif op.startswith('v_cmpx'):
                wr = R[0] + [('exec', 0)]
                rd = flat(R[1:])
            elif re.match(r'v_(add|sub|subrev|addc|subb|subbrev)_co', op) or op.startswith('v_div_scale') or op.startswith('v_mad_u64'):
                wr = R[0] + R[1]
                rd = flat(R[2:])
            elif op == 'v_nop':
                pass
            else:
                wr = R[0]
                rd = flat(R[1:])
                if op.startswith('v_fmac') or op.startswith('v_dot2c') or op.startswith('v_pk_fmac') or op.startswith('v_writelane'):
                    rd = rd + R[0]
                if op.startswith('v_cndmask') and len(ops) == 3:
                    rd = rd + [('vcc', 0)]
            if op.split('_e')[0] in TRANS or op in TRANS:
                self.kind = 'trans'
        else:
            raise ValueError('unknown instruction: ' + text)
        self.rd, self.wr = rd, wr

    @property
    def is_real(self):
        return self.kind not in ('label', 'dir')

    def states(self):
        if self.op == 's_nop':
            return int(self.text.split()[1].split(';')[0], 0) + 1
        return 1 if self.is_real else 0

    def cost(self):
        if self.kind == 'trans':
            return 2
        if self.kind == 'mfma':
            return 2
        return self.states()


def is_valu(i):
    return i.kind in ('valu', 'trans', 'permlane')


def check_hazards(seq, name='', idx=False):
    probs = []
    real = [i for i in seq if i.is_real]
    LOOK = 24
    T = []
    tm = None
    for p, c in enumerate(real):
        t = 0 if p == 0 else T[-1] + real[p - 1].states()
        if c.kind == 'mfma':
            if tm is not None:
                t = max(t, tm)
            tm = t + c.passes
        T.append(t)
    for p, c in enumerate(real):
        for q in range(p - 1, max(-1, p - LOOK - 1), -1):
            a = real[q]
            dist = T[p] - T[q] - 1
            need = 0
            why = ''
            aw, cr, cw = set(a.wr), set(c.rd), set(c.wr)
            if a.kind == 'mfma':
                P = a.passes
                big = {4: 8, 8: 12}[P]
                if c.kind == 'mfma':
                    if aw & set(c.srcab):
                        need, why = big, 'mfma D->AB'
                    elif aw & set(c.srcc):
                        if list(a.wr) == list(c.srcc) and a.passes == c.passes:
                            need = 0
                        else:
                            need, why = {4: 6, 8: 10}[P], 'mfma D->C partial'
                    elif aw & cw:
                        need, why = big, 'mfma WAW'
                elif is_valu(c) or c.kind in ('lds', 'vmem', 'dma'):
                    if aw & (cr | cw):
                        need, why = big, 'mfma D->valu/mem'
                    if is_valu(c) and set(a.srcc) & cw:
                        n2 = {4: 3, 8: 7}[P]
                        if n2 > need:
                            need, why = n2, 'mfma srcC WAR'
            elif is_valu(a):
                vw = {r for r in aw if r[0] in 'va' and len(r[0]) == 1}
                sw = aw - vw
                if c.kind == 'mfma' and vw & cr:
                    need, why = 2, 'valu->mfma'
                if a.op.startswith('v_dot') and vw & (cr | cw) and c.kind != 'salu':
                    ab = set(r for o in split_ops(c.text.split(None, 1)[1])[1:3] for r in regs_of(o.split(' ')[0]))
                    if c.op != a.op or vw & ab:
                        need, why = max(need, 3), 'dot->use'
                if c.kind == 'mfma' and ('exec', 0) in aw:
                    need, why = 4, 'valu exec->mfma'
                if c.kind == 'permlane' and vw & cr:
                    need, why = max(need, 2), 'valu->permlane'
                if is_valu(c) and 'dpp' in c.text and vw & cr:
                    need, why = max(need, 2), 'valu->dpp'
                if is_valu(c) and ('row_' in c.text or 'quad_perm' in c.text) and vw & cr:
                    need, why = max(need, 2), 'valu->dpp'
                if a.kind == 'trans' and is_valu(c) and c.kind != 'trans' and vw & cr:
                    need, why = max(need, 1), 'trans->valu'
                if a.kind == 'trans' and c.kind in ('lds', 'vmem', 'mfma') and vw & cr:
                    need, why = max(need, 1), 'trans->use'
                if (c.op.startswith('v_readfirstlane') or c.op.startswith('v_readlane')) and vw & cr:
                    need, why = max(need, 1), 'valu->readlane'
                if sw and c.kind in ('vmem', 'dma') and sw & cr:
                    need, why = max(need, 5), 'valu sgpr->vmem'
                if sw and is_valu(c) and sw & cr:
                    need, why = max(need, 2), 'valu sgpr->valu'
                    if c.op.startswith('v_readlane') or c.op.startswith('v_writelane') or c.op.startswith('v_div_fmas'):
                        need = 4
                if ('exec', 0) in aw and (c.op.startswith('v_read') or c.kind == 'permlane' or c.op.startswith('v_writelane')):
                    need, why = max(need, 4), 'valu exec->readlane'
                if ('sdwa' in a.text or 'dst_sel' in a.text or 'op_sel' in a.text) and is_valu(c) and vw & (cr | cw):
                    need, why = max(need, 1), 'opsel->valu'
                if sw and c.kind == 'salu' and sw & cr:
                    need, why = max(need, 1), 'valu sgpr->salu (pad)'
            elif a.kind == 'salu':
                if ('m0', 0) in aw and c.kind == 'dma':
                    need, why = 1, 'm0->dma'
            elif a.kind in ('vmem', 'lds') and a.data and len(a.data) >= 3:
                if set(a.data) & cw:
                    need, why = (2 if is_valu(c) else 1), 'store data WAR'
            if need > dist and idx:
                probs.append((c, need - dist))
            elif need > dist:
                probs.append('%s: need %d have %d (%s): [%s] -> [%s]' % (name, need, dist, why, a.text.strip(), c.text.strip()))
            if dist >= 20:
                break
    return probs


def insert_lgkm(seq, slack=0, init_pending=None):
    out = []
    pend = list(init_pending or [])
    t = 0
    for i in seq:
        if not i.is_real:
            out.append(i)
            continue
        if i.op == 's_waitcnt':
            m = re.search(r'lgkmcnt\((\d+)\)', i.text)
            if m:
                n = int(m.group(1))
                while len(pend) > n:
                    pend.pop(0)
        if i.kind == 'smem':
            raise ValueError('smem inside insert_lgkm region: ' + i.text)
        touched = set(i.rd) | set(i.wr)
        last = -1
        for k, (tt, w) in enumerate(pend):
            if touched & w:
                last = k
        if last >= 0:
            if slack:
                while last + 1 < len(pend) and t - pend[last + 1][0] >= slack:
                    last += 1
            n = len(pend) - 1 - last
            n = min(n, 15)
            w = Ins('s_waitcnt lgkmcnt(%d)' % n)
            out.append(w)
            t += 1
            while len(pend) > n:
                pend.pop(0)
        out.append(i)
        if i.kind == 'lds':
            pend.append((t, set(i.wr)))
        t += (i.passes if i.kind == 'mfma' else 0)
    pend = [(tt - t, w) for tt, w in pend]
    return out, pend


def loop_lgkm(body, slack=0):
    b1, p1 = insert_lgkm(body, slack)
    b2, p2 = insert_lgkm(body, slack, p1)
    b3, p3 = insert_lgkm(body, slack, p2)
    assert [x.text for x in b2] == [x.text for x in b3], 'lgkm waits did not converge'
    return b2, p2


class Prog:
    def __init__(self):
        self.ins = []

    def e(self, text, tag=None):
        for line in text.split('\n'):
            line = line.strip()
            if line:
                self.ins.append(Ins(line, tag))

    def ext(self, L):
        self.ins += L

    def text(self):
        return '\n'.join((i.text if i.kind in ('label', 'dir') else '    ' + i.text) for i in self.ins) + '\n'


def vr(a, n=1, k='v'):
    return '%s%d' % (k, a) if n == 1 else '%s[%d:%d]' % (k, a, a + n - 1)


def ar(a, n=1):
    return vr(a, n, 'a')


def sr(a, n=1):
    return vr(a, n, 's')


def kernel_desc(name, vgpr, accum, sgpr=102):
    return '''.section .rodata,"a"
.p2align 6
.amdhsa_kernel %s
  .amdhsa_next_free_vgpr %d
  .amdhsa_next_free_sgpr %d
  .amdhsa_accum_offset %d
  .amdhsa_group_segment_fixed_size 0
  .amdhsa_kernarg_size 112
  .amdhsa_user_sgpr_count 2
  .amdhsa_user_sgpr_kernarg_segment_ptr 1
  .amdhsa_system_sgpr_workgroup_id_x 1
.end_amdhsa_kernel
''' % (name, vgpr, sgpr, accum)
```

```python
NAME = 'adaLN_cond__gqa_block_cached__glu_gated_bilinear__prompt'
ACT = 2048 * 448 * 2
WS_XH = 0
WS_PAR = 0x1C0000
WS_MOD = 0x1C1000
WS_LINV = 0x1C4000
WS_X1 = 0x200000
WS_H2 = 0x600000
WS_HH = 0x800000
WS_SLAB = 0x1000000
WS_DBG = 0x4000000
WS_SIZE = 0x10000000
KA = dict(x=0, k=8, v=16, wq=24, wo=32, bx=40, wg=48, wu=56, wd=64, c=72, wmod=80, out=88, dbg=96, ws=104)


def khead(name):
    return '.text\n.globl %s\n.p2align 8\n.type %s,@function\n%s:\n' % (name, name, name)
```

```python
import sys, struct
from asmlib import *
from sched2 import add_waits
from common import *

CS = 1.4426950408889634 / 16


def f32(x):
    return '0x%08x' % struct.unpack('<I', struct.pack('<f', x))[0]


def finish(P, name=''):
    seq, _, _ = add_waits(P.ins, slack=10 ** 9)
    seq = fix_hazards(seq)
    return seq


def fix_hazards(seq):
    for it in range(200):
        pr = check_hazards(seq, idx=True)
        if not pr:
            return seq
        done = set()
        for (ins, n) in pr:
            if id(ins) in done:
                continue
            done.add(id(ins))
            need = max(m for (j, m) in pr if j is ins)
            k = next(q for q, x in enumerate(seq) if x is ins)
            seq.insert(k, Ins('s_nop %d' % (need - 1)))
    raise RuntimeError('hazards do not converge')


def gen(kname='k1_kernel'):
    H = Prog()
    H.e('''
s_cmp_ge_u32 s2, 212
s_cbranch_scc1 L1_end
s_load_dwordx2 s[20:21], s[0:1], 0
s_load_dwordx4 s[24:27], s[0:1], 72
s_load_dwordx2 s[28:29], s[0:1], 104
v_lshrrev_b32 v1, 6, v0
v_and_b32 v2, 63, v0
s_mov_b32 s7, 0x20000
s_mov_b32 s11, 0x20000
s_mov_b32 s15, 0x20000
v_readfirstlane_b32 s3, v1
s_mov_b32 s14, %d
s_cmp_ge_u32 s2, 84
s_cbranch_scc1 L1_ln
''' % WS_SIZE)
    A = Prog()
    A.e('''
v_lshrrev_b32 v3, 2, v0
v_and_b32 v4, 3, v0
v_mul_u32_u24 v5, 5376, v3
v_lshl_add_u32 v5, v4, 4, v5
v_lshlrev_b32 v6, 1, v3
s_lshl_b32 s16, s2, 6
s_add_u32 s17, s16, %d
s_add_u32 s18, s16, %d
s_add_u32 s19, s16, %d
s_mov_b32 s6, 896
s_mov_b32 s10, %d
s_waitcnt lgkmcnt(0)
s_mov_b32 s4, s24
s_mov_b32 s5, s25
s_mov_b32 s8, s26
s_mov_b32 s9, s27
s_mov_b32 s12, s28
s_mov_b32 s13, s29
''' % (112 * 5376, 224 * 5376, 336 * 5376, 448 * 5376))
    for i in range(4):
        A.e('buffer_load_ushort v%d, v6, s[4:7], 0 offen offset:%d' % (8 + i, 224 * i))
    for i in range(4):
        A.e('buffer_load_dwordx4 %s, v5, s[8:11], s%d offen' % (vr(16 + 4 * i, 4), 16 + i))
    A.e('''
s_mul_i32 s30, s2, 4682
s_lshr_b32 s30, s30, 16
s_mul_i32 s31, s30, 14
s_sub_u32 s31, s2, s31
s_lshl_b32 s32, s31, 8
s_add_u32 s32, s32, %d
s_add_u32 s33, s32, 16
s_cmp_eq_u32 s30, 0
s_cselect_b32 s32, s33, s32
s_lshl_b32 s33, s31, 7
s_mul_i32 s34, s30, 1792
s_add_u32 s33, s33, s34
s_add_u32 s33, s33, %d
s_cmp_lt_u32 s30, 2
s_cselect_b32 s32, s32, s33
s_cselect_b32 s35, 1, 0
s_cselect_b32 s36, %s, 1.0
s_cmp_eq_u32 s30, 1
s_cselect_b32 s37, 1.0, 0
s_cmp_eq_u32 s30, 4
s_cselect_b32 s37, 1.0, s37
v_bfe_u32 v40, v0, 2, 2
v_bfe_u32 v41, v0, 4, 1
v_lshl_add_u32 v40, v40, 1, v41
v_lshlrev_b32 v40, 4, v40
v_lshlrev_b32 v40, s35, v40
v_lshl_add_u32 v40, v4, 2, v40
v_lshrrev_b32 v41, 4, v0
v_lshlrev_b32 v41, 7, v41
v_lshl_add_u32 v41, v4, 5, v41
v_and_b32 v42, 31, v0
v_lshlrev_b32 v42, 2, v42
v_bfe_u32 v43, v0, 5, 1
v_mul_u32_u24 v43, %d, v43
v_add_u32 v42, v42, v43
''' % (WS_PAR, WS_MOD - 2 * 1792, f32(CS), 14 * 128))
    for i in range(4):
        c, t = 8 + i, 12 + i
        A.e('''
v_lshlrev_b32 v{c}, 16, v{c}
v_mul_f32 v{t}, {k}, v{c}
v_exp_f32 v{t}, v{t}
v_add_f32 v{t}, 1.0, v{t}
v_rcp_f32 v{t}, v{t}
v_mul_f32 v{c}, v{c}, v{t}
v_cvt_pk_bf16_f32 v{c}, v{c}, v{c}
v_lshlrev_b32 v{c}, 16, v{c}
'''.format(c=c, t=t, k=f32(-1.4426950408889634)))
    for i in range(4):
        for d in range(4):
            w = 16 + 4 * i + d
            A.e('v_lshlrev_b32 v44, 16, v%d' % w)
            A.e('v_and_b32 v45, 0xffff0000, v%d' % w)
            if i == 0:
                A.e('v_mul_f32 v%d, v44, v8\nv_mul_f32 v%d, v45, v8' % (32 + 2 * d, 33 + 2 * d))
            else:
                A.e('v_fmac_f32 v%d, v44, v%d\nv_fmac_f32 v%d, v45, v%d' % (32 + 2 * d, 8 + i, 33 + 2 * d, 8 + i))
    for rot in (4, 8):
        for j in range(8):
            A.e('v_add_f32_dpp v%d, v%d, v%d row_ror:%d row_mask:0xf bank_mask:0xf' % (32 + j, 32 + j, 32 + j, rot))
    A.e('''
s_mov_b32 exec_lo, 0x000f000f
s_mov_b32 exec_hi, 0x000f000f
ds_write_b128 v41, v[32:35]
ds_write_b128 v41, v[36:39] offset:16
s_mov_b64 exec, -1
s_waitcnt lgkmcnt(0)
s_barrier
s_cmp_lg_u32 s3, 0
s_cbranch_scc1 L1_end
''')
    for j in range(14):
        A.e('ds_read_b32 v%d, v42 offset:%d' % (16 + j, 128 * j))
    for j in range(1, 14):
        A.e('v_add_f32 v16, v16, v%d' % (16 + j))
    A.e('''
v_mov_b32 v17, v16
v_permlane32_swap_b32 v16, v17
v_add_f32 v16, v16, v17
v_cvt_pk_bf16_f32 v16, v16, v16
v_lshlrev_b32 v16, 16, v16
v_add_f32 v16, s37, v16
v_cvt_pk_bf16_f32 v16, v16, v16
v_lshlrev_b32 v16, 16, v16
v_mul_f32 v16, s36, v16
buffer_store_dword v16, v40, s[12:15], s32 offen
s_endpgm
''')
    B = Prog()
    B.e('''
L1_ln:
s_sub_u32 s16, s2, 84
v_and_b32 v3, 15, v0
v_bfe_u32 v4, v0, 4, 1
v_bfe_u32 v5, v0, 5, 1
v_mul_u32_u24 v6, 896, v3
v_lshl_add_u32 v7, v4, 5, v6
v_lshl_add_u32 v7, v5, 4, v7
s_mul_i32 s17, s16, 14336
s_lshl_b32 s18, s3, 7
s_add_u32 s18, s18, s17
s_lshl_b32 s19, s3, 11
s_add_u32 s19, s19, s17
s_mov_b32 s6, %d
v_lshlrev_b32 v40, 4, v2
v_lshlrev_b32 v41, 6, v3
v_lshl_add_u32 v42, v1, 3, v41
s_waitcnt lgkmcnt(0)
s_mov_b32 s4, s20
s_mov_b32 s5, s21
s_mov_b32 s12, s28
s_mov_b32 s13, s29
buffer_load_ushort v8, v6, s[4:7], s17 offen
buffer_load_dwordx4 v[24:27], v7, s[4:7], s18 offen
buffer_load_dwordx4 v[28:31], v7, s[4:7], s18 offen offset:64
v_lshlrev_b32 v8, 16, v8
''' % ACT)
    for d in range(8):
        w = 24 + d
        a, b = 44 + 2 * d, 45 + 2 * d
        B.e('v_lshlrev_b32 v%d, 16, v%d\nv_and_b32 v%d, 0xffff0000, v%d' % (a, w, b, w))
        B.e('v_sub_f32 v%d, v%d, v8\nv_sub_f32 v%d, v%d, v8' % (a, a, b, b))
        if d == 0:
            B.e('v_add_f32 v10, v%d, v%d\nv_mul_f32 v11, v%d, v%d\nv_fmac_f32 v11, v%d, v%d' % (a, b, a, a, b, b))
        else:
            B.e('v_add_f32 v10, v10, v%d\nv_fmac_f32 v11, v%d, v%d\nv_add_f32 v10, v10, v%d\nv_fmac_f32 v11, v%d, v%d' % (a, a, a, b, b, b))
    for sw in ('32', '16'):
        B.e('''
v_mov_b32 v12, v10
v_mov_b32 v13, v11
v_permlane{s}_swap_b32 v10, v12
v_permlane{s}_swap_b32 v11, v13
v_add_f32 v10, v10, v12
v_add_f32 v11, v11, v13
'''.format(s=sw))
    B.e('''
ds_write_b64 v42, v[10:11]
s_waitcnt lgkmcnt(0)
s_barrier
ds_read_b128 v[12:15], v41
ds_read_b128 v[16:19], v41 offset:16
ds_read_b128 v[20:23], v41 offset:32
ds_read_b64 v[10:11], v41 offset:48
''')
    for j in range(6):
        B.e('v_add_f32 v10, v10, v%d\nv_add_f32 v11, v11, v%d' % (12 + 2 * j, 13 + 2 * j))
    B.e('''
v_mul_f32 v10, {inv}, v10
v_mul_f32 v11, {inv}, v11
v_fma_f32 v11, -v10, v10, v11
v_max_f32 v11, 0, v11
v_add_f32 v11, {eps}, v11
v_rsq_f32 v11, v11
v_mul_f32 v10, v10, v11
'''.format(inv=f32(1.0 / 448), eps=f32(1e-5)))
    for d in range(8):
        a, b = 44 + 2 * d, 45 + 2 * d
        B.e('v_fma_f32 v%d, v%d, v11, -v10\nv_fma_f32 v%d, v%d, v11, -v10' % (a, a, b, b))
        B.e('v_cvt_pk_f16_f32 v%d, v%d, v%d' % (24 + d, a, b))
    for k in range(2):
        for i in range(2):
            B.e('v_permlane16_swap_b32 v%d, v%d' % (24 + 4 * k + i, 26 + 4 * k + i))
    B.e('''
buffer_store_dwordx4 v[24:27], v40, s[12:15], s19 offen
buffer_store_dwordx4 v[28:31], v40, s[12:15], s19 offen offset:1024
L1_end:
s_endpgm
''')
    P = Prog()
    P.ext(fix_hazards(H.ins))
    P.ext(finish(A))
    P.ext(finish(B))
    return khead(kname) + P.text(), kernel_desc(kname, 64, 64), '; @launch kernel=%s grid=(212,1,1) block=(448,1,1) lds=4096' % kname
```

```python
import sys
from asmlib import *
from sched2 import *
from common import *

TILE, STAGE, SETB = 17024, 34048, 68096
PAR = 136192
FLAG = PAR + 16384
LDS_BYTES = FLAG + 64
MF = 'v_mfma_f32_16x16x32_bf16'


class Cfg:
    LEAD = 24
    RW = 7
    DSTEP = 4.0
    DSTEP2 = 3.0
    BAR0 = 30
    XT = 50
    PRE_X = 2
    PRE_D1 = False
    NMID = 9
    stamps = False
    store_flags = ' sc0 sc1'
    warm = True
    verbose = False
    stamp_gaps = [0, 128, 256, 384, 512, 896, 1409]


vV, vK = [1, 2], [3, 4]
vGq, vG, vP, vX = 5, 6, 7, 8
vT = [10, 11, 12, 13]
vW = 9
vFL = [250, 251]
vB0 = 15
vGo = 0
SB = [16, 48]
NEGM = 80
vL = [88, 89, 90, 91]
vM = [92, 93, 94, 95]
vO = 96
vF = 104
PR = 112
ACC = 128
QA = 128
sK, sV, sWQ, sWO, sWS = 4, 8, 12, 16, 20
sOK, sOV = 24, 32
sMK, sMV, sMO = 40, 41, 42
sT = [43, 44, 45, 46]
sT2 = [96, 97, 98, 99]
sWM = 76
sCNT, sW, sPASS, sXH, sSL, sLI, sBAD = 47, 48, 49, 50, 51, 52, 53
sWK, sWV, sWW, sWO2, sWQ2 = 54, 55, 56, 57, 58
IMMK = [0, 1024, 2064, 3088]
IMMV = [0, 1024, 2176, 3200]
ROWJ = [0, 8, 4, 12]


def hreg(ks, rb):
    return 16 + ((ks >> 1) % 6) * 16 + ((ks & 1) * 2 + rb) * 4


def acc(db, rb):
    return ACC + (db >> 1) * 16 + rb * 8 + (db & 1) * 4


def sreg(buf, kb, rb):
    return SB[buf] + ((kb >> 1) * 2 + rb) * 8 + (kb & 1) * 4


class G:
    def __init__(self, C):
        self.C = C
        self.ops = []
        self.tn = [0, 0]

    def op(self, text, tag=None, **kw):
        o = Op(Ins(text, tag), **kw)
        self.ops.append(o)
        return o

    def stemp(self, k=0):
        self.tn[k] += 1
        return (sT, sT2)[k][self.tn[k] % 4]


def stage_of(pair, k):
    a, b = pair
    ph = pair[k]
    if ph[0] == 'K':
        return 0
    if ph[0] == 'V':
        return 1
    other = pair[1 - k]
    if other[0] == 'K':
        return 1
    if other[0] == 'V':
        return 0
    return k


def dma_list(pair, p, g):
    L = []
    z = p & 1
    bump = False
    for k in range(2):
        ph = pair[k]
        base = z * SETB + stage_of(pair, k) * STAGE
        for half in range(2):
            for j in range(4):
                sc = []
                if ph[0] == 'K':
                    if j == 0:
                        sc.append('s_add_u32 m0, s%d, %d' % (sMK, base + half * TILE))
                    d = 'buffer_load_dwordx4 v%d, %s, s%d offen offset:%d lds' % (vG, sr(sK, 4), sOK + half * 4 + j, IMMK[j])
                    bump = True
                elif ph[0] == 'V':
                    if j == 0:
                        sc.append('s_add_u32 m0, s%d, %d' % (sMV, base + half * TILE))
                    d = 'buffer_load_dwordx4 v%d, %s, s%d offen offset:%d lds' % (vG, sr(sV, 4), sOV + half * 4 + j, IMMV[j])
                    bump = True
                elif ph[0] == 'Q':
                    if j == 0:
                        sc.append('s_add_u32 m0, s%d, %d' % (sMV, base + half * TILE))
                    t = g.stemp()
                    sc.append('s_mov_b32 s%d, %d' % (t, (64 * ph[1] + 32 * half + ROWJ[j]) * 8192 - IMMV[j]))
                    d = 'buffer_load_dwordx4 v%d, %s, s%d offen offset:%d lds' % (vGq, sr(sWQ, 4), t, IMMV[j])
                else:
                    if j == 0:
                        sc.append('s_add_u32 m0, s%d, %d' % (sMO, base + half * 4096))
                    t = g.stemp()
                    sc.append('s_mov_b32 s%d, %d' % (t, (half * 4 + j) * 7168 - j * 1024 + 128 * ph[1]))
                    d = 'buffer_load_dwordx4 v%d, %s, s%d offen offset:%d lds' % (vGo, sr(sWO, 4), t, j * 1024)
                L.append((sc, d))
    return L, bump


def xh_load(g, ks, rb):
    t = g.stemp(1)
    return ('s_add_u32 s%d, s%d, %d' % (t, sXH, rb * 14336 + (ks & ~3) * 1024),
            'buffer_load_dwordx4 %s, v%d, %s, s%d offen offset:%d' % (vr(hreg(ks, rb), 4), vX, sr(sWS, 4), t, (ks & 3) * 1024))


def modulate(ks, pr, temps):
    out = []
    n = 0
    for hf in range(2):
        rd = ['ds_read_b128 %s, v%d offset:%d' % (vr(pr + hf * 8 + 4 * i, 4), vP, ks * 256 + hf * 32 + 16 * i) for i in range(2)]
        va = []
        for rb in range(2):
            for dd in range(2):
                h = hreg(ks, rb) + 2 * hf + dd
                t0, t1 = temps[(2 * n) % len(temps)], temps[(2 * n + 1) % len(temps)]
                n += 1
                c = pr + hf * 8 + 2 * dd
                va.append('v_fma_mix_f32 v%d, v%d, v%d, v%d op_sel_hi:[1,0,0]' % (t0, h, c, c + 4))
                va.append('v_fma_mix_f32 v%d, v%d, v%d, v%d op_sel:[1,0,0] op_sel_hi:[1,0,0]' % (t1, h, c + 1, c + 5))
                va.append('v_cvt_pk_bf16_f32 v%d, v%d, v%d' % (h, t0, t1))
        out.append((rd, va))
    return out


def build(C):
    g = G(C)
    NM = C.NMID
    pairs = [(('Q', 0), ('Q', 1)), (('Q', 2), ('Q', 3)), (('Q', 4), ('Q', 5)), (('Q', 6), ('K', 0))]
    pairs += [(('K', t + 1), ('V', t)) for t in range(NM)]
    pairs += [(('V', NM), ('O', 0)), (('O', 1), ('O', 2)), (('O', 3), ('O', 4)), (('O', 5), ('O', 6))]
    NP = len(pairs)
    bar = lambda p: 128 * p + 128 - C.LEAD
    for p, pair in enumerate(pairs):
        z = p & 1
        g0 = 128 * p
        wlo = bar(p - 1) + 1 if p else -30
        whi = bar(p) - C.RW if p + 1 < NP else g0 + 110
        if p < NP - 1:
            L, bump = dma_list(pairs[p + 1], p + 1, g)
            tg = 10
            if p == 0 and C.PRE_D1:
                L = []
            step = C.DSTEP if pair[0][0] == 'K' else C.DSTEP2
            dlo = max(wlo, 2)
            for n, (sc, d) in enumerate(L):
                tg = dlo + 1 + int(n * step)
                for s in sc:
                    g.op(s, tgt=tg - 3, lo=max(dlo - 3, 0))
                g.op(d, tag='D%d' % (p + 1), tgt=tg, lo=dlo, hi=bar(p) - 30, early=False)
            if bump:
                g.op('v_add_u32 v%d, 0x8000, v%d' % (vG, vG), tgt=tg + 2)
            if C.warm and p in (0, 2, 4, 6):
                k = p // 2
                t = sWV
                g.op('s_add_u32 s%d, s%d, %d' % (t, sWK, k * 262144), tgt=tg, lo=tg - 4)
                g.op('buffer_load_dword a%d, v%d, %s, s%d offen' % (244 + k, vW, sr(sWM, 4), t), tgt=tg + 3, lo=tg + 1, early=False)
        if p == 0:
            g.op('s_waitcnt vmcnt(@D0b)', gap=C.BAR0)
            g.op('s_barrier', gap=C.BAR0 + 1)
        if p == NM + 2 and C.warm:
            g.op('buffer_load_dword a248, v%d, %s, s%d offen' % (vW, sr(sWO, 4), sWO2), tgt=g0 + 52, early=False)
        if p >= 5 and p & 1 and p <= NM + 2:
            g.op('s_cbranch_scc1 L_loop', gap=g0, tag='blk')
            g.op('s_sub_u32 s%d, s%d, 1' % (sCNT, sCNT), gap=g0 + 254)
            g.op('s_cmp_lg_u32 s%d, 0' % sCNT, gap=g0 + 255)
        units = 0.0
        for k in range(2):
            ph = pair[k]
            typ, idx = ph
            b0 = g0 + 64 * k
            st = stage_of(pair, k) * STAGE
            if typ in 'QV':
                if typ == 'Q' and idx == 6:
                    order = [(db, rb, kt) for rb in range(2) for db in range(16) for kt in range(2)]
                else:
                    order = [(db, rb, kt) for db in range(16) for rb in range(2) for kt in range(2)]
            elif typ == 'K' and idx == 0:
                order = [(kb, rb, ks) for kt in range(2) for rb in range(2) for kb in (2 * kt, 2 * kt + 1) for ks in range(8)]
            else:
                order = [(kb, rb, ks) for kb in range(4) for rb in range(2) for ks in range(8)]
            if typ == 'O' and idx == 0:
                for s in range(2):
                    for cb in range(4):
                        r = vO + s * 4 + cb
                        if cb == 0:
                            g.op('v_add_u32 v%d, %d, v%d' % (r, s * SETB, vB0), tgt=g0 - 60)
                        else:
                            g.op('v_xor_b32 v%d, %d, v%d' % (r, cb * 32, vO + s * 4), tgt=g0 - 60)
            for f in range(32):
                tg = lambda: wlo + int(units * (whi - wlo) / 128.0)
                if p == 0 and k == 1:
                    wlo = C.BAR0 + 1
                    tg = lambda: wlo + int((units - 64) * (whi - wlo) / 64.0)
                if typ == 'K':
                    kb, ks = f >> 3, f & 7
                    g.op('ds_read_b128 %s, v%d offset:%d' % (ar(4 * f, 4), vK[z], st + (kb >> 1) * TILE + (kb & 1) * 512 + ks * 64),
                         tgt=tg(), lo=wlo, hi=whi, early=False)
                    units += 2
                else:
                    for u in range(2):
                        if typ == 'O':
                            cb, ks = f >> 3, f & 7
                            a, off = vO + z * 4 + cb, st + ks * 4096 + u * 2048
                        else:
                            db, kt = f >> 1, f & 1
                            a, off = vV[z], st + kt * TILE + u * 512 + db * 32
                        g.op('ds_read_b64_tr_b16 %s, v%d offset:%d' % (ar(4 * f + 2 * u, 2), a, off), tgt=tg(), lo=wlo, hi=whi, early=False)
                        units += 1
            if typ == 'Q' and idx >= 1:
                W = 62
                if idx >= C.PRE_X:
                    for n, (ks, rb) in enumerate([(2 * idx, 0), (2 * idx, 1), (2 * idx + 1, 0), (2 * idx + 1, 1)]):
                        s, d = xh_load(g, ks, rb)
                        tg0 = max(1, (idx - 1) * W - C.XT) + 3 * n
                        g.op(s, tgt=tg0 - 1, lo=max(0, tg0 - 4))
                        g.op(d, tgt=tg0, lo=0, early=False)
                n = 0
                for ks in (2 * idx, 2 * idx + 1):
                    for rd, va in modulate(ks, PR, vT):
                        for t in rd:
                            g.op(t, tgt=(idx - 1) * W + n * W // 48 - 12, lo=C.BAR0 + 1 if idx > 1 else -BIG)
                        for t in va:
                            g.op(t, tgt=(idx - 1) * W + n * W // 48, lo=max(0, (idx - 1) * W - 10))
                            n += 1
            if typ == 'K' and idx == 0:
                for r in vL:
                    g.op('v_mov_b32 v%d, 0' % r, tgt=g0)
            done = {}
            for m, (x, rb, y) in enumerate(order):
                if typ in 'QV':
                    d = vr(acc(x, rb), 4)
                    a = ar(4 * (2 * x + y), 4)
                    b = vr(hreg(2 * idx + y, rb), 4) if typ == 'Q' else vr(SB[idx & 1] + (y * 2 + rb) * 8, 4)
                    c = '0' if idx == 0 and y == 0 else d
                else:
                    d = vr(sreg(idx & 1, x, rb), 4)
                    a = ar(4 * (8 * x + y), 4)
                    if typ == 'K':
                        b = ar(QA + (y * 2 + rb) * 4, 4)
                        c = d if y else ('0' if idx == 0 and x < 2 else vr(NEGM + 4 * rb, 4))
                    else:
                        b = vr(ACC + y * 16 + rb * 8, 4)
                        c = d if y else '0'
                g.op('%s %s, %s, %s, %s' % (MF, d, a, b, c), gap=b0 + m, tag=('G', b0 + m))
                if typ == 'K' and idx == 0 and x == 1 and y == 7:
                    s = SB[0] + rb * 8
                    m0_, m1_ = vM[2 * rb], vM[2 * rb + 1]
                    T = ['v_accvgpr_read_b32 v%d, a%d' % (m0_, vFL[rb]), 'v_max3_f32 v%d, v%d, v%d, v%d' % (m0_, s, s + 1, m0_)]
                    T += ['v_max3_f32 v%d, v%d, v%d, v%d' % (m0_, m0_, s + i, s + i + 1) for i in (2, 4, 6)]
                    for sw in ('32', '16'):
                        T += ['v_mov_b32 v%d, v%d' % (m1_, m0_), 'v_permlane%s_swap_b32 v%d, v%d' % (sw, m0_, m1_),
                              'v_max_f32 v%d, v%d, v%d' % (m0_, m0_, m1_)]
                    T += ['v_sub_f32 v%d, 0, v%d' % (NEGM + 4 * rb + i, m0_) for i in range(4)]
                    for t in T:
                        g.op(t, tgt=b0)
            if typ == 'Q' and idx == 6:
                for rb in range(2):
                    for e in range(8):
                        r = ACC + e * 16 + rb * 8
                        tg = b0 + rb * 32 + e * 4 + 8
                        for i in range(4):
                            g.op('v_cvt_pk_bf16_f32 v%d, v%d, v%d' % (r + i, r + 2 * i, r + 2 * i + 1), tgt=tg)
                        for i in range(2):
                            g.op('v_permlane16_swap_b32 v%d, v%d' % (r + i, r + 2 + i), tgt=tg)
                        for i in range(4):
                            g.op('v_accvgpr_write_b32 a%d, v%d' % (QA + (e * 2 + rb) * 4 + i, r + i), tgt=tg)
            if typ == 'K':
                T = []
                for kt in range(2):
                    for half in range(2):
                        for rb in range(2):
                            if idx == 0:
                                half_, rb_ = rb, half
                            else:
                                half_, rb_ = half, rb
                            r = SB[idx & 1] + (kt * 2 + rb_) * 8
                            for i in (2 * half_, 2 * half_ + 1):
                                a, b = r + 2 * i, r + 2 * i + 1
                                if idx == 0 and kt == 0:
                                    T += ['v_add_f32 v%d, v%d, v%d' % (x, x, NEGM + 4 * rb_) for x in (a, b)]
                                T += ['v_exp_f32 v%d, v%d' % (a, a), 'v_exp_f32 v%d, v%d' % (b, b),
                                      'v_add_f32 v%d, v%d, v%d' % (vL[2 * rb_], vL[2 * rb_], a),
                                      'v_add_f32 v%d, v%d, v%d' % (vL[2 * rb_ + 1], vL[2 * rb_ + 1], b),
                                      'v_cvt_pk_bf16_f32 v%d, v%d, v%d' % (r + i, a, b)]
                span, off = (96, 28) if idx == 0 else (128, 30)
                if idx == NM:
                    span, off = 100, 20
                for n, t in enumerate(T):
                    g.op(t, tgt=b0 + off + n * span // len(T))
                if idx == NM:
                    T = []
                    for rb in range(2):
                        a, b = vL[2 * rb], vL[2 * rb + 1]
                        T += ['v_add_f32 v%d, v%d, v%d' % (a, a, b)]
                        for sw in ('32', '16'):
                            T += ['v_mov_b32 v%d, v%d' % (b, a), 'v_permlane%s_swap_b32 v%d, v%d' % (sw, a, b),
                                  'v_add_f32 v%d, v%d, v%d' % (a, a, b)]
                        T += ['v_rcp_f32 v%d, v%d' % (b, a)]
                    T += ['v_add_f32 v%d, v%d, v%d' % (vM[1], vL[0], vL[2]),
                          'v_cmp_ngt_f32 vcc, 0x5f800000, v%d' % vM[1],
                          's_or_b32 s%d, vcc_lo, vcc_hi' % sBAD,
                          'v_mov_b32 v%d, s%d' % (vM[1], sBAD),
                          'v_mov_b32 v%d, s%d' % (vM[2], sWW),
                          'ds_write_b32 v%d, v%d' % (vM[2], vM[1])]
                    for n, t in enumerate(T):
                        g.op(t, tgt=b0 + 140 + n, hi=bar(p + 1) - C.RW)
                    g.op('v_mov_b32 v%d, %d' % (vM[3], FLAG), tgt=b0 + 150)
                    g.op('ds_read_b128 %s, v%d' % (vr(vF, 4), vM[3]), lo=bar(p + 1) + 1, tgt=bar(p + 1) + 10)
            if typ == 'V' and idx == NM:
                for e in range(8):
                    for rb in range(2):
                        r = ACC + e * 16 + rb * 8
                        for i in range(4):
                            g.op('v_cvt_pk_bf16_f32 v%d, v%d, v%d' % (r + i, r + 2 * i, r + 2 * i + 1), tgt=b0 + e * 8 + 10)
            if typ == 'O':
                for cp in range(2):
                    for rb in range(2):
                        r = SB[idx & 1] + (cp * 2 + rb) * 8
                        tg = b0 + cp * 32 + rb * 8 + 28
                        for i in range(8):
                            g.op('v_mul_f32 v%d, v%d, v%d' % (r + i, r + i, vL[2 * rb + 1]), tgt=tg - (16 if i < 4 else 0))
                        for i in range(4):
                            g.op('v_cvt_pk_bf16_f32 v%d, v%d, v%d' % (r + i, r + 2 * i, r + 2 * i + 1), tgt=tg)
                        t = g.stemp(1)
                        kk = 2 * idx + cp
                        g.op('s_add_u32 s%d, s%d, %d' % (t, sSL, rb * 14336 + (kk & ~3) * 1024), tgt=tg, lo=tg - 8)
                        g.op('buffer_store_dwordx4 %s, v%d, %s, s%d offen offset:%d%s' % (vr(r, 4), vX, sr(sWS, 4), t, (kk & 3) * 1024, C.store_flags), tgt=tg + 3)
        if p + 1 < NP:
            g.op('s_waitcnt vmcnt(@D%d) lgkmcnt(0)' % (p + 1), gap=bar(p))
            g.op('s_barrier', gap=bar(p) + 1)
    return g, pairs


def gen(C, kname='k2_kernel'):
    g, pairs = build(C)
    NP = len(pairs)
    NM = C.NMID
    logical = list(g.ops)
    pre, gaps, post = schedule(g.ops, NP * 128, 'k2')
    lin = pre + flatten(gaps) + post
    verify(logical, lin)
    if C.verbose:
        for p in range(NP):
            gg = gaps[128 * p:128 * p + 128]
            pat = ' '.join(''.join(o.cls for o in sc + vec) or '.' for m, sc, vec in gg)
            print(p, pairs[p], model_cycles([o.ins for o in flatten(gg)]), pat, file=sys.stderr)
    P = Prog()
    P.e("""
s_cmp_ge_u32 s2, 256
s_cbranch_scc1 L2_end
s_load_dwordx4 s[60:63], s[0:1], 8
s_load_dwordx4 s[64:67], s[0:1], 24
s_load_dwordx2 s[68:69], s[0:1], 104
""")
    if C.stamps:
        P.e('s_memtime s[80:81]\ns_memrealtime s[100:101]')
    P.e("""
v_lshrrev_b32 v20, 6, v0
v_and_b32 v21, 63, v0
v_and_b32 v22, 15, v0
v_readfirstlane_b32 s48, v20
v_bfe_u32 v23, v0, 4, 2
v_bfe_u32 v24, v0, 5, 1
v_and_b32 v25, 31, v0
v_lshlrev_b32 v8, 4, v21
s_and_b32 s70, s2, 7
s_lshr_b32 s71, s2, 3
s_and_b32 s72, s71, 1
s_lshl_b32 s73, s70, 1
s_add_u32 s72, s72, s73
s_lshr_b32 s73, s71, 1
s_lshl_b32 s74, s73, 3
s_lshl_b32 s75, s48, 1
s_add_u32 s74, s74, s75
s_mul_i32 s50, s74, 14336
s_mul_i32 s51, s72, %d
s_add_u32 s51, s51, s50
s_add_u32 s51, s51, %d
s_lshl_b32 s52, s72, 13
s_lshl_b32 s75, s74, 6
s_add_u32 s52, s52, s75
s_add_u32 s52, s52, %d
s_mul_i32 s40, s48, 4160
s_mul_i32 s41, s48, 4256
s_lshl_b32 s42, s48, 13
s_lshl_b32 s59, s48, 12
s_add_u32 s59, s59, %d
s_lshl_b32 s56, s48, 2
s_add_u32 s56, s56, %d
s_lshl_b32 s54, s71, 13
s_and_b32 s55, s48, 1
s_lshl_b32 s55, s55, 12
s_add_u32 s54, s54, s55
s_mul_i32 s57, s74, 1792
s_mul_i32 s58, s74, 28672
s_mov_b32 s49, 0
""" % (ACT, WS_SLAB, WS_LINV, PAR, FLAG))
    for half in range(2):
        for j in range(4):
            P.e('s_mov_b32 s%d, %d' % (sOK + half * 4 + j, half * 16384 + ROWJ[j] * 512 - IMMK[j] + 16))
            P.e('s_mov_b32 s%d, %d' % (sOV + half * 4 + j, half * 16384 + ROWJ[j] * 512 - IMMV[j] + 128))
    P.e("""
v_lshl_add_u32 v26, v24, 4, v20
v_lshlrev_b32 v27, 4, v25
v_lshl_add_u32 v6, v26, 9, v27
v_lshl_add_u32 v5, v26, 13, v27
v_accvgpr_write_b32 a252, v6
v_lshl_add_u32 v7, v23, 6, s59
v_mov_b32 v13, 0xff800000
v_lshlrev_b32 v9, 6, v21
v_accvgpr_write_b32 a250, v13
v_accvgpr_write_b32 a251, v13
v_lshrrev_b32 v26, 2, v22
v_mul_u32_u24 v1, 4256, v26
v_and_b32 v27, 1, v23
v_mul_u32_u24 v28, 2176, v27
v_add_u32 v1, v1, v28
v_lshrrev_b32 v28, 1, v23
v_lshl_add_u32 v1, v28, 10, v1
v_and_b32 v29, 3, v22
v_lshl_add_u32 v1, v29, 3, v1
v_add_u32 v2, %d, v1
v_mul_u32_u24 v3, 4160, v29
v_and_b32 v30, 1, v26
v_mul_u32_u24 v30, 2064, v30
v_add_u32 v3, v3, v30
v_lshrrev_b32 v30, 3, v22
v_lshl_add_u32 v3, v30, 10, v3
v_lshl_add_u32 v3, v27, 5, v3
v_lshl_add_u32 v3, v28, 4, v3
v_add_u32 v4, %d, v3
v_lshl_add_u32 v30, v23, 2, v26
v_lshlrev_b32 v15, 7, v30
v_bfe_u32 v30, v30, 1, 2
v_lshl_add_u32 v15, v30, 5, v15
v_lshl_add_u32 v15, v29, 3, v15
v_lshrrev_b32 v30, 3, v21
v_and_b32 v26, 7, v21
v_lshlrev_b32 v14, 13, v30
v_lshl_add_u32 v14, v26, 6, v14
v_lshl_add_u32 v30, v20, 6, v30
v_mul_u32_u24 v30, 896, v30
v_lshlrev_b32 v31, 1, v23
v_xor_b32 v31, v31, v26
v_lshl_add_u32 v0, v31, 4, v30
s_lshl_b32 s70, s70, 20
s_lshl_b32 s71, s72, 9
s_mul_i32 s72, s72, 229376
s_waitcnt lgkmcnt(0)
s_add_u32 s12, s64, s71
s_addc_u32 s13, s65, 0
s_sub_u32 s14, %d, s71
s_mov_b32 s15, 0x20000
s_mov_b32 s20, s68
s_mov_b32 s21, s69
s_mov_b32 s22, %d
s_mov_b32 s23, 0x20000
s_add_u32 s4, s60, s70
s_addc_u32 s5, s61, 0
s_sub_u32 s4, s4, 16
s_subb_u32 s5, s5, 0
s_mov_b32 s6, 0x100010
s_mov_b32 s7, 0x20000
s_add_u32 s8, s62, s70
s_addc_u32 s9, s63, 0
s_sub_u32 s8, s8, 0x8080
s_subb_u32 s9, s9, 0
s_mov_b32 s10, 0x108080
s_mov_b32 s11, 0x20000
s_add_u32 s16, s66, s72
s_addc_u32 s17, s67, 0
s_mov_b32 s18, 229376
s_mov_b32 s19, 0x20000
""" % (SETB, SETB, 448 * 8192, WS_SIZE))
    P.e("""
s_cmp_lt_u32 s48, 2
s_cselect_b32 s76, s60, s62
s_cselect_b32 s77, s61, s63
s_add_u32 s76, s76, s70
s_addc_u32 s77, s77, 0
s_mov_b32 s78, 0x100000
s_mov_b32 s79, 0x20000
L2_restart:
""")
    Q = Prog()
    Q.e('s_mov_b32 m0, s59\ns_mov_b32 s43, %d' % WS_PAR)
    Q.e('buffer_load_dwordx4 v8, s[20:23], s43 offen lds', tag='PAR')
    L, _ = dma_list(pairs[0], 0, g)
    for half in range(2):
        for ks in (2 * half, 2 * half + 1):
            for rb in range(2):
                s, d = xh_load(g, ks, rb)
                Q.e(s)
                Q.e(d)
        for sc, d in L[8 * half:8 * half + 8]:
            for s in sc:
                Q.e(s)
            Q.e(d, tag='D0' + 'ab'[half])
    Q.e('s_mov_b32 m0, s59\ns_mov_b32 s43, %d' % WS_PAR)
    for j in range(1, 4):
        Q.e('buffer_load_dwordx4 v8, s[20:23], s43 offen offset:%d lds' % (1024 * j), tag='D0b')
    if C.warm:
        Q.e('buffer_load_dword a249, v14, s[12:15], s58 offen')
    Q.e('s_waitcnt vmcnt(@PAR)')
    for ks in range(2):
        for rd, va in modulate(ks, ACC + 16 * ks, vT):
            for t in rd:
                Q.e(t)
    tmp = list(range(200, 216))
    for ks in range(2):
        for rd, va in modulate(ks, ACC + 16 * ks, tmp):
            for t in [x for x in va if 'fma' in x] + [x for x in va if 'cvt' in x]:
                Q.e(t)
    for ks in range(4, 2 * C.PRE_X):
        for rb in range(2):
            s, d = xh_load(g, ks, rb)
            Q.e(s)
            Q.e(d)
        if ks == 5 and C.PRE_D1:
            for sc, d in dma_list(pairs[1], 1, g)[0]:
                for s in sc:
                    Q.e(s)
                Q.e(d, tag='D1')
    Q.e('s_waitcnt vmcnt(@D0a)\ns_barrier')
    Q.e('; T1')
    Q.ext([o.ins for o in pre])
    Q.e('s_mov_b32 s%d, NTRIPS' % sCNT)
    Q.ext([o.ins for o in flatten(gaps)])
    Q.e('s_nop 7')
    Q.ext([o.ins for o in post])
    Q.e('v_or3_b32 v%d, v%d, v%d, v%d' % (vF, vF, vF + 1, vF + 2))
    Q.e('v_or_b32 v%d, v%d, v%d' % (vF, vF, vF + 3))
    Q.e('s_nop 0\nv_readfirstlane_b32 s%d, v%d' % (sBAD, vF))
    seq, _, _ = add_waits(Q.ins)
    cuts = [n for n, i in enumerate(seq) if i.tag == 'blk']
    blocks = [seq[cuts[k] + 1:cuts[k + 1]] for k in range(len(cuts) - 1)]
    txt = [[i.text for i in b] for b in blocks]
    k0 = next(k for k in range(len(blocks) - 1) if all(txt[k] == txt[j] for j in range(k, len(blocks))))
    assert len(blocks) - k0 >= 2
    trips = 14 - k0
    head = [i for i in seq[:cuts[k0]] if i.tag != 'blk']
    body = blocks[k0]
    tail = seq[cuts[-1] + 1:]
    print('k2: peeled blocks %d trips %d; model cycles head %d body %d (ideal %d) tail %d' % (
        k0, trips, model_cycles(head), model_cycles(body), 256 * 16, model_cycles(tail)), file=sys.stderr)
    for n, i in enumerate(head):
        if 'NTRIPS' in i.text:
            head[n] = Ins('s_mov_b32 s%d, %d' % (sCNT, trips + k0))
    i = max(n for n, x in enumerate(body) if x.op == 's_cmp_lg_u32')
    assert all(x.kind != 'salu' or x.op == 's_waitcnt' for x in body[i + 1:])

    SG = list(C.stamp_gaps)

    def stamped(L):
        out = []
        for x in L:
            out.append(x)
            if C.stamps and isinstance(x.tag, tuple) and x.tag[1] in SG:
                n = SG.index(x.tag[1])
                out.append(Ins('s_memtime s[%d:%d]' % (82 + 2 * n, 83 + 2 * n)))
        return out
    P.ext(stamped(head))
    P.e('L_loop:')
    P.ext(body)
    P.e('s_cbranch_scc1 L_loop')
    P.ext(stamped(tail))
    P.e('s_cmp_lg_u32 s%d, 0\ns_cselect_b32 s%d, 0, s%d' % (sPASS, sBAD, sBAD))
    P.e('s_cmp_lg_u32 s%d, 0\ns_cbranch_scc1 L2_fb' % sBAD)
    if C.stamps:
        P.e("""
s_memtime s[60:61]
s_waitcnt vmcnt(0)
s_memtime s[62:63]
s_memrealtime s[64:65]
s_lshl_b32 s47, s2, 2
s_add_u32 s47, s47, s48
s_lshl_b32 s47, s47, 6
s_add_u32 s47, s47, %d
s_waitcnt lgkmcnt(0)
s_sub_u32 s64, s64, s100
""" % WS_DBG)
        for n in range(7):
            P.e('s_sub_u32 s%d, s%d, s80\nv_mov_b32 v%d, s%d' % (82 + 2 * n, 82 + 2 * n, 20 + n, 82 + 2 * n))
        P.e("""
s_sub_u32 s60, s60, s80
s_sub_u32 s62, s62, s80
v_mov_b32 v27, s60
v_mov_b32 v28, s60
v_mov_b32 v29, s62
v_mov_b32 v30, s64
v_mov_b32 v31, s100
v_mov_b32 v32, s49
v_mov_b32 v36, 0
buffer_store_dwordx4 v[20:23], v36, s[20:23], s47 offen
buffer_store_dwordx4 v[24:27], v36, s[20:23], s47 offen offset:16
buffer_store_dwordx4 v[28:31], v36, s[20:23], s47 offen offset:32
buffer_store_dword v32, v36, s[20:23], s47 offen offset:48
""")
    P.e('L2_end:\ns_endpgm')
    F = Prog()
    F.e("""
L2_fb:
v_mov_b32 v12, 0xff800000
v_mov_b32 v13, 0xff800000
s_mov_b32 s49, 1
s_mov_b32 s47, 32
v_accvgpr_read_b32 v6, a252
s_waitcnt vmcnt(0) lgkmcnt(0)
s_barrier
L2_fbl:
""")
    for half in range(2):
        F.e('s_add_u32 m0, s%d, %d\ns_nop 0' % (sMK, half * TILE))
        for j in range(4):
            F.e('buffer_load_dwordx4 v%d, %s, s%d offen offset:%d lds' % (vG, sr(sK, 4), sOK + half * 4 + j, IMMK[j]))
    F.e('v_add_u32 v6, 0x8000, v6\ns_waitcnt vmcnt(0)\ns_barrier')
    for f in range(32):
        kb, ks = f >> 3, f & 7
        F.e('ds_read_b128 %s, v%d offset:%d' % (ar(4 * f, 4), vK[0], (kb >> 1) * TILE + (kb & 1) * 512 + ks * 64))
    F.e('s_waitcnt lgkmcnt(0)\ns_barrier')
    for kb in range(4):
        for rb in range(2):
            for ks in range(8):
                d = vr(sreg(0, kb, rb), 4)
                F.e('%s %s, %s, %s, %s' % (MF, d, ar(4 * (8 * kb + ks), 4), ar(QA + (ks * 2 + rb) * 4, 4), d if ks else '0'))
    F.e('s_nop 7')
    for kb in range(4):
        for rb in range(2):
            r = sreg(0, kb, rb)
            for i in (0, 2):
                F.e('v_max3_f32 v%d, v%d, v%d, v%d' % (12 + rb, 12 + rb, r + i, r + i + 1))
    F.e("""
s_sub_u32 s47, s47, 1
s_cmp_lg_u32 s47, 0
s_cbranch_scc1 L2_fbl
v_accvgpr_write_b32 a250, v12
v_accvgpr_write_b32 a251, v13
v_accvgpr_read_b32 v6, a252
s_branch L2_restart
""")
    lin = P.ins[:]
    li = [n for n, i in enumerate(lin) if i.label == 'L_loop'][0]
    le = [n for n, i in enumerate(lin) if i.text.startswith('s_cbranch_scc1 L_loop')][0]
    lin = lin[:le + 1] + lin[li:le + 1] + lin[le + 1:]
    for p in check_hazards(lin) + check_hazards(F.ins + F.ins):
        print('HAZARD', p, file=sys.stderr)
    P.ext(F.ins)
    code = khead(kname) + P.text().replace('L_loop', 'L2_loop')
    return code, kernel_desc(kname, 512, 256), '; @launch kernel=%s grid=(256,1,1) block=(256,1,1) lds=%d' % (kname, LDS_BYTES)


def assemble(parts):
    hdr = '\n'.join(p[2] for p in parts) + '\n.amdgcn_target "amdgcn-amd-amdhsa--gfx950"\n'
    return hdr + ''.join(p[0] for p in parts) + ''.join(p[1] for p in parts)


if __name__ == '__main__':
    C = Cfg()
    out = sys.argv[1]
    for a in sys.argv[2:]:
        k, v = a.split('=', 1)
        setattr(C, k, eval(v))
    open(out, 'w').write(assemble([gen(C)]))
```

```python
import sys
from asmlib import *
from common import *
from gen_k1 import f32, finish, fix_hazards


def gen(kname='k3_kernel', ld_flags=''):
    H = Prog()
    H.e('''
s_cmp_ge_u32 s2, 256
s_cbranch_scc1 L3_end
s_load_dwordx2 s[20:21], s[0:1], 0
s_load_dwordx2 s[28:29], s[0:1], 104
v_lshrrev_b32 v1, 6, v0
v_bfe_u32 v2, v0, 5, 1
v_bfe_u32 v3, v0, 3, 2
v_readfirstlane_b32 s3, v1
v_and_b32 v4, 7, v0
v_lshlrev_b32 v5, 10, v2
v_lshl_add_u32 v5, v3, 8, v5
v_lshl_add_u32 v5, v4, 4, v5
v_mul_u32_u24 v6, 896, v4
v_lshl_add_u32 v6, v2, 6, v6
v_lshl_add_u32 v6, v3, 3, v6
v_lshlrev_b32 v7, 7, v2
v_lshl_add_u32 v7, v3, 5, v7
v_lshlrev_b32 v8, 6, v4
v_lshl_add_u32 v9, v1, 3, v8
s_mov_b32 s6, %d
s_mov_b32 s7, 0x20000
s_mov_b32 s14, %d
s_mov_b32 s15, 0x20000
s_lshr_b32 s16, s2, 1
s_and_b32 s17, s2, 1
s_mul_i32 s16, s16, 14336
s_lshl_b32 s18, s3, 11
s_add_u32 s18, s18, s16
s_lshl_b32 s19, s17, 7
s_add_u32 s18, s18, s19
s_mul_i32 s22, s2, 7168
s_lshl_b32 s23, s3, 7
s_add_u32 s22, s22, s23
s_lshl_b32 s23, s3, 8
s_add_u32 s23, s23, %d
s_mov_b32 s24, 0x3f80
s_mov_b32 s25, 0x3f800000
''' % (ACT, WS_SIZE, WS_MOD))
    for h in range(16):
        H.e('s_add_u32 s%d, s18, %d' % (32 + h, WS_SLAB + h * ACT))
    H.e('''
s_add_u32 s26, s18, %d
s_add_u32 s27, s18, %d
s_waitcnt lgkmcnt(0)
s_mov_b32 s4, s20
s_mov_b32 s5, s21
s_mov_b32 s12, s28
s_mov_b32 s13, s29
''' % (WS_X1, WS_H2))
    B = Prog()
    S, X, PA, AC = 32, 10, 96, 16
    for h in range(16):
        B.e('buffer_load_dwordx4 %s, v5, s[12:15], s%d offen%s' % (vr(S + 4 * h, 4), 32 + h, ld_flags))
    B.e('buffer_load_dwordx2 %s, v6, s[4:7], s22 offen' % vr(X, 2))
    B.e('buffer_load_dwordx2 %s, v6, s[4:7], s22 offen offset:32' % vr(X + 2, 2))
    for vec in range(3):
        for i in range(2):
            B.e('buffer_load_dwordx4 %s, v7, s[12:15], s23 offen offset:%d' % (vr(PA + vec * 8 + 4 * i, 4), vec * 1792 + 16 * i))
    for h in range(16):
        for d in range(4):
            for e in range(2):
                a = AC + 2 * d + e
                B.e('v_dot2_f32_bf16 v%d, v%d, s%d, %s' % (a, S + 4 * h + d, 24 + e, 'v%d' % a if h else '0'))
    GA, SBV, C2 = PA, PA + 8, PA + 16
    T = 24
    for d in range(4):
        B.e('v_lshlrev_b32 v%d, 16, v%d\nv_and_b32 v%d, 0xffff0000, v%d' % (T + 2 * d, X + d, T + 2 * d + 1, X + d))
    for i in range(8):
        B.e('v_fma_f32 v%d, v%d, v%d, v%d' % (AC + i, AC + i, GA + i, T + i))
    for d in range(4):
        B.e('v_cvt_pk_bf16_f32 v%d, v%d, v%d' % (S + d, AC + 2 * d, AC + 2 * d + 1))
    B.e('buffer_store_dwordx4 %s, v5, s[12:15], s26 offen' % vr(S, 4))

    def xl(r, t):
        B.e('v_add_f32_dpp v{r}, v{r}, v{r} row_ror:8 row_mask:0xf bank_mask:0xf'.format(r=r))
        for sw in ('16', '32'):
            B.e('v_mov_b32 v{t}, v{r}\nv_permlane{s}_swap_b32 v{r}, v{t}\nv_add_f32 v{r}, v{r}, v{t}'.format(r=r, t=t, s=sw))
    B.e('v_add_f32 v10, v16, v17\nv_add_f32 v11, v18, v19\nv_add_f32 v12, v20, v21\nv_add_f32 v13, v22, v23')
    B.e('v_add_f32 v10, v10, v11\nv_add_f32 v12, v12, v13\nv_add_f32 v10, v10, v12')
    xl(10, 12)
    B.e('v_mul_f32 v10, %s, v10' % f32(1 / 64.))
    for i in range(8):
        B.e('v_sub_f32 v%d, v%d, v10' % (AC + i, AC + i))
    B.e('v_mul_f32 v11, v16, v16\nv_mul_f32 v12, v17, v17')
    for i in range(2, 8):
        B.e('v_fmac_f32 v%d, v%d, v%d' % (11 + i % 2, AC + i, AC + i))
    B.e('v_add_f32 v11, v11, v12')
    xl(11, 12)
    B.e('''
ds_write_b64 v9, v[10:11]
s_waitcnt lgkmcnt(0)
s_barrier
ds_read_b128 v[40:43], v8
ds_read_b128 v[44:47], v8 offset:16
ds_read_b128 v[48:51], v8 offset:32
ds_read_b64 v[52:53], v8 offset:48
''')
    B.e('v_add_f32 v12, v40, v42\nv_add_f32 v13, v41, v43')
    for j in range(2, 7):
        B.e('v_add_f32 v12, v12, v%d\nv_add_f32 v13, v13, v%d' % (40 + 2 * j, 41 + 2 * j))
    B.e('v_mul_f32 v12, %s, v12' % f32(1 / 7.))
    for j in range(7):
        B.e('v_sub_f32 v%d, v%d, v12' % (40 + 2 * j, 40 + 2 * j))
    B.e('v_mul_f32 v14, v40, v40')
    for j in range(1, 7):
        B.e('v_fmac_f32 v14, v%d, v%d' % (40 + 2 * j, 40 + 2 * j))
    B.e('''
v_mul_f32 v13, {inv}, v13
v_fmac_f32 v13, {inv7}, v14
v_add_f32 v13, {eps}, v13
v_rsq_f32 v13, v13
v_sub_f32 v10, v10, v12
v_mul_f32 v10, v10, v13
'''.format(inv=f32(1 / 448.), inv7=f32(1 / 7.), eps=f32(1e-5)))
    for i in range(8):
        B.e('v_fma_f32 v%d, v%d, v13, v10' % (AC + i, AC + i))
    for i in range(8):
        B.e('v_fma_f32 v%d, v%d, v%d, v%d' % (AC + i, AC + i, C2 + i, SBV + i))
    for d in range(4):
        B.e('v_cvt_pk_bf16_f32 v%d, v%d, v%d' % (S + 4 + d, AC + 2 * d, AC + 2 * d + 1))
    B.e('buffer_store_dwordx4 %s, v5, s[12:15], s27 offen' % vr(S + 4, 4))
    B.e('L3_end:\ns_endpgm')
    P = Prog()
    P.ext(fix_hazards(H.ins))
    P.ext(finish(B))
    return khead(kname) + P.text(), kernel_desc(kname, 128, 128), '; @launch kernel=%s grid=(256,1,1) block=(448,1,1) lds=1024' % kname
```

```python
import sys
from asmlib import *
from sched2 import *
from common import *
from gen_k1 import fix_hazards

MF = 'v_mfma_f32_16x16x32_bf16'
TILE, STAGE = 16640, 33280
IMM = {(0, 0): 0, (0, 1): 1024, (1, 0): 2080, (1, 1): 3104}


class Cfg:
    LEAD = 20
    PRE = 2
    store_flags = ''
    xcd = 0
    verbose = False


def gen(C=Cfg(), kname='k4_kernel'):
    vR, vG, vX = [1, 2], 3, 4
    HB, ACC = 16, 128
    sG, sU, sWS = 4, 8, 12
    sM, sH, sO = 16, 17, 18
    sT, sT2 = [20, 21, 22, 23], [24, 25, 26, 27]
    cnt = [0, 0]

    def st(k):
        cnt[k] += 1
        return (sT, sT2)[k][cnt[k] % 4]

    def dma(j):
        L = []
        for kt in range(2):
            for n, (b, mat) in enumerate(sorted(IMM)):
                sc = []
                if n == 0:
                    sc.append('s_add_u32 m0, s%d, %d' % (sM, (j % 4) * STAGE + kt * TILE))
                t = st(0)
                sc.append('s_mov_b32 s%d, %d' % (t, (64 * j + 32 * kt + 4 * b) * 3584 - IMM[(b, mat)] + 4096))
                L.append((sc, 'buffer_load_dwordx4 v%d, %s, s%d offen offset:%d lds' % (vG, sr((sG, sU)[mat], 4), t, IMM[(b, mat)])))
        return L

    def hload(j):
        L = []
        for ks in (2 * j, 2 * j + 1):
            for rb in range(2):
                t = st(1)
                L.append((['s_add_u32 s%d, s%d, %d' % (t, sH, rb * 14336 + (ks & ~3) * 1024)],
                          'buffer_load_dwordx4 %s, v%d, %s, s%d offen offset:%d' % (vr(HB + (ks * 2 + rb) * 4, 4), vX, sr(sWS, 4), t, (ks & 3) * 1024)))
        return L

    acc = lambda mat, cb, rb: ACC + mat * 64 + (cb >> 1) * 16 + rb * 8 + (cb & 1) * 4
    ops = []

    def op(text, tag=None, **kw):
        ops.append(Op(Ins(text, tag), **kw))
    pro = []
    for j in range(C.PRE):
        pro += [(sc, d, None) for sc, d in hload(j)] + [(sc, d, 'S%d' % j) for sc, d in dma(j)]
    bar = lambda j: 64 * j + 64 - C.LEAD
    tg = 1
    for j in range(C.PRE, 7):
        lo = 0 if j < 4 else bar(j - 3) + 1
        tg = max(tg, lo + 1)
        for k, (sc, d) in enumerate(hload(j) + dma(j)):
            for s in sc:
                op(s, tgt=tg - 2, lo=max(0, tg - 6))
            op(d, tag=None if k < 4 else 'S%d' % j, tgt=tg, lo=lo if k >= 4 else 0, hi=bar(j - 1) - 10, early=False)
            tg += 2
    for j in range(7):
        b0 = 64 * j
        wlo = bar(j - 1) + 1 if j else -30
        order = [(cb, mat, rb, kt) for cb in range(8) for mat in range(2) for rb in range(2) for kt in range(2)]
        f = 0
        for cb in range(8):
            for mat in range(2):
                for kt in range(2):
                    for u in range(2):
                        off = (j & 1) * STAGE + kt * TILE + mat * 1024 + u * 512 + cb * 32
                        op('ds_read_b64_tr_b16 %s, v%d offset:%d' % (ar(4 * f + 2 * u, 2), vR[(j >> 1) & 1], off),
                           tgt=wlo + 2 * f + u, lo=wlo)
                    f += 1
        for m, (cb, mat, rb, kt) in enumerate(order):
            d = vr(acc(mat, cb, rb), 4)
            op('%s %s, %s, %s, %s' % (MF, d, ar(4 * (cb * 4 + mat * 2 + kt), 4), vr(HB + ((2 * j + kt) * 2 + rb) * 4, 4),
                                      '0' if j == 0 and kt == 0 else d), gap=b0 + m)
        if j < 6:
            op('s_waitcnt vmcnt(@S%d)' % (j + 1), gap=bar(j))
            op('s_barrier', gap=bar(j) + 1)
    for e in range(4):
        for rb in range(2):
            r = acc(0, 2 * e, rb)
            for i in range(8):
                op('v_mul_f32 v%d, v%d, v%d' % (r + i, r + i, r + 64 + i), tgt=0)
            for i in range(4):
                op('v_cvt_pk_bf16_f32 v%d, v%d, v%d' % (r + i, r + 2 * i, r + 2 * i + 1), tgt=0)
            op('buffer_store_dwordx4 %s, v%d, %s, s%d offen offset:%d%s' % (vr(r, 4), vX, sr(sWS, 4), sO + rb, e * 1024, C.store_flags), tgt=0)
    logical = list(ops)
    pre, gaps, post = schedule(ops, 448, 'k4')
    verify(logical, pre + flatten(gaps) + post)
    if C.verbose:
        print(' '.join(''.join(o.cls for o in sc + vec) or '.' for m, sc, vec in gaps), file=sys.stderr)
    P = Prog()
    P.e('''
s_cmp_ge_u32 s2, 224
s_cbranch_scc1 L4_end
s_load_dwordx4 s[32:35], s[0:1], 48
s_load_dwordx2 s[36:37], s[0:1], 104
v_lshrrev_b32 v5, 6, v0
v_and_b32 v6, 63, v0
v_and_b32 v7, 15, v0
v_readfirstlane_b32 s3, v5
v_bfe_u32 v8, v0, 4, 2
v_lshlrev_b32 v4, 4, v6
s_and_b32 s40, s2, 7
s_lshr_b32 s41, s2, 3
''')
    if C.xcd == 0:
        P.e('''
s_mul_i32 s42, s41, 9363
s_lshr_b32 s42, s42, 16
s_mul_i32 s43, s42, 7
s_sub_u32 s43, s41, s43
s_lshr_b32 s44, s40, 1
s_lshl_b32 s44, s44, 2
s_add_u32 s42, s42, s44
s_and_b32 s44, s40, 1
s_mul_i32 s44, s44, 7
s_add_u32 s43, s43, s44
''')
    else:
        P.e('''
s_and_b32 s42, s41, 1
s_lshl_b32 s44, s40, 1
s_add_u32 s42, s42, s44
s_lshr_b32 s43, s41, 1
''')
    P.e('''
s_lshl_b32 s44, s42, 3
s_lshl_b32 s45, s3, 1
s_add_u32 s44, s44, s45
s_mul_i32 s17, s44, 14336
s_add_u32 s17, s17, %d
s_mul_i32 s18, s44, 57344
s_lshl_b32 s45, s43, 12
s_add_u32 s18, s18, s45
s_add_u32 s18, s18, %d
s_add_u32 s19, s18, 57344
s_mul_i32 s16, s3, 4160
s_lshl_b32 s46, s43, 8
s_sub_u32 s6, %d, s46
s_mov_b32 s10, s6
s_mov_b32 s7, 0x20000
s_mov_b32 s11, 0x20000
s_mov_b32 s14, %d
s_mov_b32 s15, 0x20000
v_lshl_add_u32 v9, v8, 3, v5
v_mul_u32_u24 v3, 3584, v9
v_lshl_add_u32 v3, v7, 4, v3
v_lshrrev_b32 v9, 2, v7
v_mul_u32_u24 v1, 4160, v9
v_and_b32 v9, 1, v8
v_mul_u32_u24 v9, 2080, v9
v_add_u32 v1, v1, v9
v_lshrrev_b32 v9, 1, v8
v_lshl_add_u32 v1, v9, 8, v1
v_and_b32 v9, 3, v7
v_lshl_add_u32 v1, v9, 3, v1
v_add_u32 v2, %d, v1
s_waitcnt lgkmcnt(0)
s_add_u32 s4, s32, s46
s_addc_u32 s5, s33, 0
s_sub_u32 s4, s4, 4096
s_subb_u32 s5, s5, 0
s_add_u32 s8, s34, s46
s_addc_u32 s9, s35, 0
s_sub_u32 s8, s8, 4096
s_subb_u32 s9, s9, 0
s_mov_b32 s12, s36
s_mov_b32 s13, s37
''' % (WS_H2, WS_HH, 448 * 3584 + 4096, WS_SIZE, 2 * STAGE))
    Q = Prog()
    for sc, d, tag in pro:
        for s in sc:
            Q.e(s)
        Q.e(d, tag=tag)
    Q.e('s_waitcnt vmcnt(@S0)\ns_barrier')
    Q.ext([o.ins for o in pre + flatten(gaps)])
    Q.ext([o.ins for o in post])
    seq, _, _ = add_waits(Q.ins)
    P.ext(seq)
    P.e('L4_end:\ns_endpgm')
    n0 = len(P.ins)
    P.ins = fix_hazards(P.ins)
    print('k4: model cycles %d, nops added %d' % (model_cycles(seq), len(P.ins) - n0), file=sys.stderr)
    return khead(kname) + P.text(), kernel_desc(kname, 512, 256), '; @launch kernel=%s grid=(224,1,1) block=(256,1,1) lds=%d' % (kname, 4 * STAGE)
```

```python
import sys
from asmlib import *
from sched2 import *
from common import *
from gen_k1 import fix_hazards

MF = 'v_mfma_f32_16x16x32_bf16'
NS = 9
WB = NS * 4096


class Cfg:
    PRE = 7
    verbose = False


def gen(C=Cfg(), kname='k5_kernel'):
    vA, vG, vX = 4, 2, 3
    ACC = 16
    RING = 80
    NR = 12
    XR, GB = 128, 136
    vPO, vOUT, vLW, vLR = 8, 9, 10, 11
    sD, sWS, sOUT = 4, 8, 12
    sM, sH, sA = 16, 17, 18
    sT, sT2 = [20, 21, 22, 23], [24, 25, 26, 27]
    cnt = [0, 0]

    def st(k):
        cnt[k] += 1
        return (sT, sT2)[k][cnt[k] % 4]

    def loads(k):
        L = []
        for j in range(4):
            sc = []
            if j == 0:
                sc.append('s_add_u32 m0, s%d, %d' % (sM, (k % NS) * 4096))
            t = st(0)
            sc.append('s_add_u32 s%d, s%d, %d' % (t, sA, (32 * k + 8 * j) * 896 - 1024 * j))
            L.append((sc, 'buffer_load_dwordx4 v%d, %s, s%d offen offset:%d lds' % (vG, sr(sD, 4), t, 1024 * j), 'A%d' % k))
        for rb in range(4):
            t = st(1)
            L.append((['s_add_u32 s%d, s%d, %d' % (t, sH, rb * 57344 + (k & ~3) * 1024)],
                      'buffer_load_dwordx4 %s, v%d, %s, s%d offen offset:%d' % (ar((k * 4 + rb) * 4, 4), vX, sr(sWS, 4), t, (k & 3) * 1024), None))
        return L
    ops = []

    def op(text, tag=None, **kw):
        ops.append(Op(Ins(text, tag), **kw))
    pro = []
    for k in range(C.PRE):
        pro += loads(k)
    for k in range(C.PRE, 14):
        lo = max(0, 16 * (k - NS) + 16)
        tg = max(16 * (k - C.PRE), lo) + 1
        for sc, d, tag in loads(k):
            for s in sc:
                op(s, tgt=tg - 2, lo=max(0, tg - 6))
            op(d, tag=tag, tgt=tg, lo=lo if tag else 0, early=False)
            tg += 1.5
    acc = lambda rb, cb: ACC + rb * 16 + cb * 4
    f = 0
    for k in range(14):
        wg = 16 * k - 14
        if k:
            op('s_waitcnt vmcnt(@A%d)' % k, gap=wg)
        fr = []
        for cb in range(4):
            r = RING + 4 * (f % NR)
            f += 1
            fr.append(r)
            for u in range(2):
                op('ds_read_b64_tr_b16 %s, v%d offset:%d' % (vr(r + 2 * u, 2), vA + cb, (k % NS) * 4096 + u * 2048), tgt=wg + cb, lo=wg)
        m = 0
        for cb in range(4):
            for rb in range(4):
                d = vr(acc(rb, cb), 4)
                op('%s %s, %s, %s, %s' % (MF, d, vr(fr[cb], 4), ar((k * 4 + rb) * 4, 4), d if k else '0'), gap=16 * k + m)
                m += 1
    logical = list(ops)
    pre, gaps, post = schedule(ops, 224, 'k5')
    verify(logical, pre + flatten(gaps) + post)
    if C.verbose:
        print(' '.join(''.join(o.cls for o in sc + vec) or '.' for m, sc, vec in gaps), file=sys.stderr)
    P = Prog()
    P.e('''
s_cmp_ge_u32 s2, 224
s_cbranch_scc1 L5_end
s_load_dwordx2 s[32:33], s[0:1], 64
s_load_dwordx2 s[34:35], s[0:1], 88
s_load_dwordx2 s[36:37], s[0:1], 104
v_lshrrev_b32 v12, 6, v0
v_and_b32 v13, 63, v0
v_and_b32 v14, 15, v0
v_readfirstlane_b32 s3, v12
v_bfe_u32 v15, v0, 4, 2
v_lshlrev_b32 v3, 4, v13
s_and_b32 s40, s2, 7
s_lshr_b32 s41, s2, 3
s_mul_i32 s42, s41, 9363
s_lshr_b32 s42, s42, 16
s_mul_i32 s43, s42, 7
s_sub_u32 s43, s41, s43
s_lshl_b32 s44, s40, 2
s_add_u32 s42, s42, s44
s_mul_i32 s17, s42, %d
s_mul_i32 s44, s3, 14336
s_add_u32 s17, s17, s44
s_add_u32 s17, s17, %d
s_mul_i32 s18, s3, %d
s_lshl_b32 s45, s43, 7
s_add_u32 s18, s18, s45
s_mul_i32 s16, s3, %d
s_lshl_b32 s46, s42, 2
s_add_u32 s46, s46, s3
s_mul_i32 s46, s46, 14336
s_add_u32 s47, s46, s45
s_lshl_b32 s48, s43, 11
s_add_u32 s46, s46, s48
s_add_u32 s46, s46, %d
s_lshl_b32 s48, s43, 8
s_add_u32 s48, s48, %d
s_mov_b32 s6, %d
s_mov_b32 s7, 0x20000
s_mov_b32 s10, %d
s_mov_b32 s11, 0x20000
s_mov_b32 s14, %d
s_mov_b32 s15, 0x20000
v_lshrrev_b32 v1, 3, v13
v_mul_u32_u24 v2, 896, v1
v_and_b32 v1, 7, v13
v_lshlrev_b32 v5, 1, v15
v_xor_b32 v1, v1, v5
v_lshl_add_u32 v2, v1, 4, v2
v_lshrrev_b32 v1, 2, v14
v_lshl_add_u32 v1, v15, 2, v1
v_lshlrev_b32 v4, 7, v1
v_bfe_u32 v1, v1, 1, 2
v_lshl_add_u32 v4, v1, 5, v4
v_and_b32 v1, 3, v14
v_lshl_add_u32 v4, v1, 3, v4
v_add_u32 v4, s16, v4
v_xor_b32 v5, 32, v4
v_xor_b32 v6, 64, v4
v_xor_b32 v7, 0x60, v4
v_lshlrev_b32 v8, 5, v15
v_mul_u32_u24 v9, 896, v14
v_and_b32 v1, 1, v15
v_lshl_add_u32 v9, v1, 5, v9
v_lshrrev_b32 v1, 1, v15
v_lshl_add_u32 v9, v1, 4, v9
v_add_u32 v10, s16, v3
v_lshl_add_u32 v11, v12, 12, v3
s_waitcnt lgkmcnt(0)
s_mov_b32 s4, s32
s_mov_b32 s5, s33
s_mov_b32 s8, s36
s_mov_b32 s9, s37
s_mov_b32 s12, s34
s_mov_b32 s13, s35
''' % (4 * 57344, WS_HH, 448 * 896, WB, WS_X1, WS_MOD + 3 * 1792, 1792 * 896, WS_SIZE, ACT))
    Q = Prog()
    for sc, d, tag in pro:
        for s in sc:
            Q.e(s)
        Q.e(d, tag=tag)
    Q.e('s_waitcnt vmcnt(@A0)')
    Q.ext([o.ins for o in pre + flatten(gaps)])
    Q.ext([o.ins for o in post])
    for e in range(2):
        Q.e('buffer_load_dwordx4 %s, v%d, %s, s46 offen offset:%d' % (vr(XR + 4 * e, 4), vX, sr(sWS, 4), 1024 * e))
        for i in range(2):
            Q.e('buffer_load_dwordx4 %s, v%d, %s, s48 offen offset:%d' % (vr(GB + 8 * e + 4 * i, 4), vPO, sr(sWS, 4), 128 * e + 16 * i))
    tailn = 6
    ld = Q.ins[-tailn:]
    del Q.ins[-tailn:]
    mi = [n for n, i in enumerate(Q.ins) if i.kind == 'mfma']
    for n, l in enumerate(ld):
        mi = [q for q, i in enumerate(Q.ins) if i.kind == 'mfma']
        Q.ins.insert(mi[-60 + 4 * n], l)
    for rb in range(4):
        for cb in range(4):
            Q.e('ds_write_b128 v%d, %s offset:%d' % (vLW, vr(acc(rb, cb), 4), rb * 4096 + cb * 1024))
    Q.e('s_waitcnt lgkmcnt(0)\ns_barrier')
    for w in range(4):
        if w == 2:
            Q.e('v_add_u32 v%d, %d, v%d' % (vLR, 2 * WB, vLR))
        for cb in range(4):
            Q.e('ds_read_b128 %s, v%d offset:%d' % (vr(acc(w, cb), 4), vLR, (w & 1) * WB + cb * 1024))
    for w in range(1, 4):
        for i in range(16):
            Q.e('v_add_f32 v%d, v%d, v%d' % (ACC + i, ACC + i, ACC + 16 * w + i))
    T = ACC + 16
    for d in range(8):
        Q.e('v_lshlrev_b32 v%d, 16, v%d\nv_and_b32 v%d, 0xffff0000, v%d' % (T + 2 * d, XR + d, T + 2 * d + 1, XR + d))
    for i in range(16):
        Q.e('v_fma_f32 v%d, v%d, v%d, v%d' % (ACC + i, ACC + i, GB + i, T + i))
    for d in range(8):
        Q.e('v_cvt_pk_bf16_f32 v%d, v%d, v%d' % (T + d, ACC + 2 * d, ACC + 2 * d + 1))
    for e in range(2):
        for i in range(2):
            Q.e('v_permlane16_swap_b32 v%d, v%d' % (T + 4 * e + i, T + 4 * e + 2 + i))
    for e in range(2):
        Q.e('buffer_store_dwordx4 %s, v%d, %s, s47 offen offset:%d' % (vr(T + 4 * e, 4), vOUT, sr(sOUT, 4), 64 * e))
    seq, _, _ = add_waits(Q.ins)
    P.ext(seq)
    P.e('L5_end:\ns_endpgm')
    n0 = len(P.ins)
    P.ins = fix_hazards(P.ins)
    print('k5: model cycles %d, nops added %d' % (model_cycles(seq), len(P.ins) - n0), file=sys.stderr)
    return khead(kname) + P.text(), kernel_desc(kname, 512, 256), '; @launch kernel=%s grid=(224,1,1) block=(256,1,1) lds=%d' % (kname, 4 * WB)
```

```python
import re, sys
from asmlib import *

BIG = 10 ** 9


class Op:
    __slots__ = ('ins', 'cls', 'gap', 'lo', 'hi', 'tgt', 'preds', 'succs', 'pos', 'idx', 'early', 'soft')

    def __init__(self, text, tgt=None, lo=-BIG, hi=BIG, gap=None, early=True):
        self.ins = text if isinstance(text, Ins) else Ins(text)
        k = self.ins.kind
        self.cls = {'mfma': 'm', 'lds': 'r', 'vmem': 'x', 'dma': 'x', 'valu': 'v', 'trans': 'w', 'permlane': 'w',
                    'salu': 's'}[k]
        self.gap = gap
        self.lo, self.hi, self.tgt = lo, hi, tgt
        self.preds, self.succs = [], []
        self.pos = None
        self.early = early


RDLAT = 9


def dist(a, b, kind):
    ca, cb = a.cls, b.cls
    if ca == 'm':
        if kind in ('RAW', 'WAW'):
            return 3
        return 0 if cb in 'rx' else 1
    if cb == 'm':
        if kind == 'RAW':
            return RDLAT if ca == 'r' else 2
        return 1
    if ca == 's':
        if cb == 's':
            return 1
        if kind == 'RAW' and ('m0', 0) in a.ins.wr:
            return 1
        return 0
    if cb == 's':
        return 1
    if ca == 'r' and kind == 'RAW':
        return RDLAT
    if ca == 'x' and kind == 'RAW':
        return 1
    if b.ins.kind == 'permlane' and kind == 'RAW':
        return 2
    if ca == 'v' and cb == 'v':
        if 'op_sel' in a.ins.text:
            return 1
        return 0
    return 1


def build_deps(ops):
    lastw, readers = {}, {}
    for n, o in enumerate(ops):
        o.idx = n
        seen = {}

        def add(p, kind):
            if p is o:
                return
            if p.cls == 'm' and o.cls == 'm':
                return
            d = dist(p, o, kind)
            if seen.get(id(p), (None, -1))[1] < d:
                seen[id(p)] = (p, d)
        for r in o.ins.rd:
            if r in lastw:
                add(lastw[r], 'RAW')
        for r in o.ins.wr:
            if r in lastw:
                add(lastw[r], 'WAW')
            for p in readers.get(r, ()):
                add(p, 'WAR')
        for p, d in seen.values():
            o.preds.append((p, d))
            p.succs.append((o, d))
        for r in o.ins.wr:
            lastw[r] = o
            readers[r] = []
        for r in o.ins.rd:
            readers.setdefault(r, []).append(o)
    for o in ops:
        if o.gap is not None:
            o.lo = o.hi = o.gap
    for o in ops:
        if o.gap is None:
            for p, d in o.preds:
                o.lo = max(o.lo, p.lo + d)
    for o in reversed(ops):
        if o.gap is None:
            for s, d in o.succs:
                o.hi = min(o.hi, s.hi - d)


def schedule(ops, ngaps, name='', first=0):
    build_deps(ops)
    mf = {}
    pinned = {}
    free = []
    for o in ops:
        if o.cls == 'm':
            assert o.gap not in mf, o.ins.text
            mf[o.gap] = o
            o.pos = o.gap
        elif o.gap is not None:
            pinned.setdefault(o.gap, []).append(o)
            o.pos = o.gap
        else:
            if o.lo > o.hi:
                print('sched %s: infeasible window lo %d hi %d: %s' % (name, o.lo, o.hi, o.ins.text), file=sys.stderr)
            if o.tgt is None:
                o.tgt = o.hi
            o.tgt = max(min(o.tgt, o.hi), o.lo)
            free.append(o)
    pre = [o for o in free if o.hi < first]
    for o in pre:
        o.pos = first - 1000
    free = [o for o in free if o.hi >= first]
    free.sort(key=lambda o: (o.tgt, o.idx))
    gaps = []
    forced = 0
    late = 0

    def ready(o, g):
        if o.lo > g:
            return False
        for p, d in o.preds:
            if p.pos is None or p.pos + d > g:
                return False
        return True

    for g in range(first, ngaps):
        sc = [o for o in pinned.get(g, []) if o.cls == 's']
        vec = [o for o in pinned.get(g, []) if o.cls != 's']
        slots = 2 - sum(2 if o.cls in 'xw' else 1 for o in vec) - max(0, len(sc) - 1)
        nomem = any(o.ins.op in ('s_waitcnt',) and o.gap is not None and 'lgkmcnt(0)' in o.ins.text for o in sc)

        def cands(pred):
            for o in free:
                if o.tgt > g + 80:
                    break
                if o.pos is None and pred(o) and (o.early or o.tgt <= g) and ready(o, g):
                    yield o

        def take(o):
            o.pos = g
            free.remove(o)
        if not sc:
            c = next(cands(lambda o: o.cls == 's'), None)
            if c is not None:
                take(c)
                sc.append(c)
        okv = lambda o: o.cls != 's' and not (nomem and o.cls in 'rx')
        bytes_rd = 0
        while slots > 0:
            c = next(cands(lambda o: okv(o) and (slots == 2 or o.cls in 'rv') and
                           not (o.cls == 'r' and bytes_rd and 'b128' in o.ins.op and o.hi > g + 2)), None)
            if c is None:
                break
            if c.cls in 'rv' and slots == 2 and c.tgt > g:
                c.pos = g
                c2 = next(cands(lambda o: okv(o) and o.cls in 'rv'), None)
                c.pos = None
                if c2 is None:
                    c3 = next(cands(lambda o: okv(o) and o.cls in 'xw'), None)
                    if c3 is not None:
                        c = c3
            take(c)
            vec.append(c)
            if c.cls == 'r':
                bytes_rd += 1
            slots -= 2 if c.cls in 'xw' else 1
        while True:
            c = next((o for o in free if o.hi <= g and ready(o, g) and not (nomem and o.cls in 'rx')), None)
            if c is None:
                break
            if c.cls == 'r' and c.hi + 3 > g and min([s.hi for s, d in c.succs if d == RDLAT] + [BIG]) - RDLAT == c.hi:
                c.hi += 1
                late += 1
                continue
            take(c)
            forced += 1
            (sc if c.cls == 's' else vec).append(c)
        vec.sort(key=lambda o: (0 if o.cls in 'rx' else 1))
        gaps.append([mf.get(g), sc, vec])
    post = sorted(free, key=lambda o: o.idx)
    print('sched %s: pre %d post %d forced %d late %d' % (name, len(pre), len(post), forced, late), file=sys.stderr)
    return sorted(pre, key=lambda o: o.idx), gaps, post


def verify(logical, linear):
    def flow(L):
        lastw, res = {}, {}
        for o in L:
            res[id(o)] = (tuple((r, lastw.get(r)) for r in o.ins.rd), tuple((r, lastw.get(r)) for r in o.ins.wr))
            for r in o.ins.wr:
                lastw[r] = id(o)
        return res
    a, b = flow(logical), flow(linear)
    assert len(a) == len(b)
    for o in logical:
        assert a[id(o)] == b[id(o)], 'dataflow changed at ' + o.ins.text


def flatten(gaps):
    out = []
    for m, sc, vec in gaps:
        if m is not None:
            out.append(m)
        out += sc + vec
    return out


def add_waits(seq, lg=None, vm=None, slack=40):
    lg = list(lg or [])
    vm = list(vm or [])
    out = []
    t = 0
    nl = nv = 0
    marks = []
    lg = [(tt, w, tg, -1) for tt, w, tg in lg]
    vm = [(tt, w, tg, -1) for tt, w, tg in vm]

    def place(q, last, cname, cmax, cnt_now, which):
        nonlocal marks
        for mi in range(len(marks) - 1, max(-1, len(marks) - 4), -1):
            oi, ml, mv, mt = marks[mi]
            mc = ml if which == 'l' else mv
            if q[last][3] >= mc:
                break
            k = last
            while which == 'l' and k + 1 < len(q) and q[k + 1][3] < mc and mt - q[k + 1][0] >= slack:
                k += 1
            n_at = sum(1 for e in q[k + 1:] if e[3] < mc)
            c = min(n_at, cmax)
            out.insert(oi + 1, Ins('s_waitcnt %s(%d)' % (cname, c)))
            marks = [(a + (1 if a > oi else 0), b, d, e) for (a, b, d, e) in marks if a != oi]
            before = [e for e in q if e[3] < mc]
            after = [e for e in q if e[3] >= mc]
            q[:] = before[len(before) - c:] + after if c else after
            return
        k = last
        while which == 'l' and k + 1 < len(q) and t - q[k + 1][0] >= slack:
            k += 1
        c = min(len(q) - 1 - k, cmax)
        out.append(Ins('s_waitcnt %s(%d)' % (cname, c)))
        q[:] = q[len(q) - c:] if c else []

    for n, i in enumerate(seq):
        if not i.is_real:
            out.append(i)
            marks = []
            continue
        assert i.kind != 'smem'
        if i.op == 's_waitcnt':
            m = re.search(r'vmcnt\(@(\w+)\)', i.text)
            if m:
                last = max([k for k, e in enumerate(vm) if e[2] == m.group(1)] + [-1])
                c = min(len(vm) - 1 - last, 63)
                i = Ins(i.text.replace(m.group(0), 'vmcnt(%d)' % c), i.tag)
            m = re.search(r'lgkmcnt\((\d+)\)', i.text)
            if m:
                c = int(m.group(1))
                lg[:] = lg[max(0, len(lg) - c):] if c else []
            m = re.search(r'vmcnt\((\d+)\)', i.text)
            if m:
                c = int(m.group(1))
                vm[:] = vm[max(0, len(vm) - c):] if c else []
        touched = set(i.rd) | set(i.wr)
        for q, cname, cmax, which in ((lg, 'lgkmcnt', 15, 'l'), (vm, 'vmcnt', 63, 'v')):
            last = -1
            for k, e in enumerate(q):
                if touched & e[1]:
                    last = k
            if last >= 0:
                place(q, last, cname, cmax, 0, which)
        if i.op in ('s_barrier',) or i.op.startswith('s_cbranch') or i.op == 's_branch':
            marks = []
        out.append(i)
        if i.kind == 'mfma':
            t += i.passes
            nxt = seq[n + 1] if n + 1 < len(seq) else None
            if nxt is None or nxt.kind != 'salu':
                marks.append((len(out) - 1, nl, nv, t))
        else:
            t += 0
        if i.kind == 'lds':
            lg.append((t, set(i.wr), i.tag, nl))
            nl += 1
        if i.kind in ('vmem', 'dma'):
            vm.append((t, set(i.wr), i.tag, nv))
            nv += 1
    return out, [(tt - t, w, tg) for tt, w, tg, _ in lg], [(tt - t, w, tg) for tt, w, tg, _ in vm]


def model_cycles(seq):
    tot = 0
    cur = None
    prev = None
    for i in seq:
        if not i.is_real:
            continue
        if i.kind == 'mfma':
            if cur is not None:
                tot += max(16, cur)
            cur = 4
            prev = i
            continue
        if cur is None:
            cur = 0
        c = 4
        vecop = i.kind in ('valu', 'trans', 'permlane', 'lds', 'vmem', 'dma')
        if vecop and prev is not None and prev.kind == 'mfma':
            c += 4
        if i.kind in ('trans', 'vmem', 'dma', 'permlane'):
            c += 4
        if i.kind in ('lds', 'vmem', 'dma') and prev is not None and is_valu(prev):
            c += 8
        if i.op == 's_nop':
            c = 4 * i.states()
        cur += c
        prev = i
    if cur is not None:
        tot += max(16, cur)
    return tot
```

```python
import sys
import gen_k1, gen_k2, gen_k3, gen_k4, gen_k5
from common import *

def make(opts):
    C2, C4, C5 = gen_k2.Cfg(), gen_k4.Cfg(), gen_k5.Cfg()
    k3 = {}
    for a in opts:
        k, v = a.split('=', 1)
        who, k = k.split('.')
        if who == 'k3':
            k3[k] = eval(v)
        else:
            setattr({'k2': C2, 'k4': C4, 'k5': C5}[who], k, eval(v))
    parts = [gen_k1.gen(), gen_k2.gen(C2), gen_k3.gen(**k3), gen_k4.gen(C4), gen_k5.gen(C5)]
    ref = open('cdna_kernels/%s.s.ref' % NAME).read().split('\n')
    hdr = [l for l in ref if l.startswith(';') and '@launch' not in l and 'Override' not in l and 'grid=ceil' not in l]
    return '\n'.join(hdr) + '\n' + gen_k2.assemble(parts)

if __name__ == '__main__':
    open(sys.argv[1], 'w').write(make(sys.argv[2:]))
```

```python
NAME = 'adaLN_cond__gqa_block_cached__glu_gated_bilinear__prompt'
ACT = 2048 * 448 * 2
WS_XH = 0
WS_PAR = 0x1C0000
WS_MOD = 0x1C1000
WS_LINV = 0x1C4000
WS_X1 = 0x200000
WS_FLG = 0x400000
WS_H2 = 0x600000
WS_HH = 0x800000
WS_SLAB = 0x1000000
WS_DBG = 0x4000000
WS_SIZE = 0x10000000
KA = dict(x=0, k=8, v=16, wq=24, wo=32, bx=40, wg=48, wu=56, wd=64, c=72, wmod=80, out=88, dbg=96, ws=104)


def khead(name):
    return '.text\n.globl %s\n.p2align 8\n.type %s,@function\n%s:\n' % (name, name, name)


def add_stamps(ins, Ins, gaps, srd, wave_sgpr, region):
    out = []
    n = 0
    first = True
    for x in ins[:-2]:
        out.append(x)
        if first and x.kind == 'smem':
            out += [Ins('s_memtime s[80:81]'), Ins('s_memrealtime s[100:101]')]
            first = False
        if x.kind == 'mfma':
            if n in gaps:
                k = gaps.index(n)
                out.append(Ins('s_memtime s[%d:%d]' % (82 + 2 * k, 83 + 2 * k)))
            n += 1
        if x.text.startswith('; ST'):
            k = int(x.text[4:])
            out.append(Ins('s_memtime s[%d:%d]' % (82 + 2 * k, 83 + 2 * k)))
    T = """s_memtime s[60:61]
s_waitcnt vmcnt(0)
s_memtime s[62:63]
s_memrealtime s[64:65]
s_lshl_b32 s66, s2, 3
s_add_u32 s66, s66, s%d
s_lshl_b32 s66, s66, 6
s_add_u32 s66, s66, %d
s_waitcnt lgkmcnt(0)
s_sub_u32 s64, s64, s100
""" % (wave_sgpr, WS_DBG + region * 0x40000)
    for k in range(7):
        T += 's_sub_u32 s%d, s%d, s80\nv_mov_b32 v%d, s%d\n' % (82 + 2 * k, 82 + 2 * k, 20 + k, 82 + 2 * k)
    T += """s_sub_u32 s60, s60, s80
s_sub_u32 s62, s62, s80
v_mov_b32 v27, s60
v_mov_b32 v28, s60
v_mov_b32 v29, s62
v_mov_b32 v30, s64
v_mov_b32 v31, s100
v_mov_b32 v36, 0
buffer_store_dwordx4 v[20:23], v36, s[{a}:{b}], s66 offen
buffer_store_dwordx4 v[24:27], v36, s[{a}:{b}], s66 offen offset:16
buffer_store_dwordx4 v[28:31], v36, s[{a}:{b}], s66 offen offset:32""".format(a=srd, b=srd + 3)
    out += [Ins(t) for t in T.split('\n')]
    return out + ins[-2:]
```

```python
import sys, struct
from asmlib import *
from sched2 import add_waits
from common import *

CS = 1.4426950408889634 / 16


def f32(x):
    return '0x%08x' % struct.unpack('<I', struct.pack('<f', x))[0]


def finish(P, name=''):
    seq, _, _ = add_waits(P.ins, slack=10 ** 9)
    seq = fix_hazards(seq)
    return seq


def fix_hazards(seq):
    for it in range(200):
        pr = check_hazards(seq, idx=True)
        if not pr:
            return seq
        done = set()
        for (ins, n) in pr:
            if id(ins) in done:
                continue
            done.add(id(ins))
            need = max(m for (j, m) in pr if j is ins)
            k = next(q for q, x in enumerate(seq) if x is ins)
            seq.insert(k, Ins('s_nop %d' % (need - 1)))
    raise RuntimeError('hazards do not converge')


def prefetch(P, pf, cpf=0, tag=''):
    if not pf:
        return
    P.e('''
s_and_b32 s46, s2, 7
s_lshr_b32 s47, s2, 3
s_lshl_b32 s52, s46, 20
s_sub_u32 s53, s47, 8
s_cmp_ge_u32 s47, 17
s_cselect_b32 s48, s42, s40
s_cselect_b32 s49, s43, s41
s_cselect_b32 s54, 9, 0
s_sub_u32 s53, s53, s54
s_mul_i32 s53, s53, 57344
s_add_u32 s52, s52, s53
s_lshl_b32 s53, s46, 10
s_mul_i32 s54, s47, %d
s_add_u32 s53, s53, s54
s_mov_b32 s50, %d
s_cmp_lt_u32 s47, 8
s_cselect_b32 s48, s44, s48
s_cselect_b32 s49, s45, s49
s_cselect_b32 s50, %d, s50
s_cselect_b32 s52, s53, s52
s_cselect_b32 s54, 13, 10
s_mov_b32 s51, 0x20000
''' % (56 * 8192, 0x800000 if pf > 1 else 0, 448 * 8192))
    if cpf:
        P.e('''
s_getpc_b64 s[56:57]
L1_pc%s:
s_add_u32 s56, s56, k2_kernel-L1_pc%s
s_addc_u32 s57, s57, 0
s_cmp_eq_u32 s47, %d
s_cselect_b32 s48, s56, s48
s_cselect_b32 s49, s57, s49
s_cselect_b32 s50, L2_tail-k2_kernel, s50
s_cselect_b32 s52, 0, s52
''' % (tag, tag, cpf))
    P.e('''
v_lshrrev_b32 v60, 3, v0
v_lshlrev_b32 v60, s54, v60
v_and_b32 v61, 7, v0
v_lshl_add_u32 v60, v61, 7, v60
buffer_load_dword v61, v60, s[48:51], s52 offen
''')


def gen(kname='k1_kernel', pf=1, stamps=False, cpf=8):
    H = Prog()
    H.e('''
s_cmp_ge_u32 s2, 212
s_cbranch_scc1 L1_end
s_load_dwordx2 s[20:21], s[0:1], 0
s_load_dwordx4 s[24:27], s[0:1], 72
s_load_dwordx2 s[28:29], s[0:1], 104
s_load_dwordx4 s[40:43], s[0:1], 8
s_load_dwordx2 s[44:45], s[0:1], 24
v_lshrrev_b32 v1, 6, v0
v_and_b32 v2, 63, v0
s_mov_b32 s7, 0x20000
s_mov_b32 s11, 0x20000
s_mov_b32 s15, 0x20000
v_readfirstlane_b32 s3, v1
s_mov_b32 s14, %d
s_cmp_ge_u32 s2, 84
s_cbranch_scc1 L1_ln
''' % WS_SIZE)
    A = Prog()
    A.e('''
v_lshrrev_b32 v3, 2, v0
v_and_b32 v4, 3, v0
v_mul_u32_u24 v5, 5376, v3
v_lshl_add_u32 v5, v4, 4, v5
v_lshlrev_b32 v6, 1, v3
s_lshl_b32 s16, s2, 6
s_add_u32 s17, s16, %d
s_add_u32 s18, s16, %d
s_add_u32 s19, s16, %d
s_mov_b32 s6, 896
s_mov_b32 s10, %d
s_waitcnt lgkmcnt(0)
s_mov_b32 s4, s24
s_mov_b32 s5, s25
s_mov_b32 s8, s26
s_mov_b32 s9, s27
s_mov_b32 s12, s28
s_mov_b32 s13, s29
''' % (112 * 5376, 224 * 5376, 336 * 5376, 448 * 5376))
    for i in range(4):
        A.e('buffer_load_ushort v%d, v6, s[4:7], 0 offen offset:%d' % (8 + i, 224 * i))
    for i in range(4):
        A.e('buffer_load_dwordx4 %s, v5, s[8:11], s%d offen' % (vr(16 + 4 * i, 4), 16 + i))
    prefetch(A, pf, cpf, 'a')
    A.e('''
s_mul_i32 s30, s2, 4682
s_lshr_b32 s30, s30, 16
s_mul_i32 s31, s30, 14
s_sub_u32 s31, s2, s31
s_lshl_b32 s32, s31, 8
s_add_u32 s32, s32, %d
s_add_u32 s33, s32, 16
s_cmp_eq_u32 s30, 0
s_cselect_b32 s32, s33, s32
s_lshl_b32 s33, s31, 7
s_mul_i32 s34, s30, 1792
s_add_u32 s33, s33, s34
s_add_u32 s33, s33, %d
s_cmp_lt_u32 s30, 2
s_cselect_b32 s32, s32, s33
s_cselect_b32 s35, 1, 0
s_cselect_b32 s36, %s, 1.0
s_cmp_eq_u32 s30, 1
s_cselect_b32 s37, 1.0, 0
s_cmp_eq_u32 s30, 4
s_cselect_b32 s37, 1.0, s37
v_bfe_u32 v40, v0, 2, 2
v_bfe_u32 v41, v0, 4, 1
v_lshl_add_u32 v40, v40, 1, v41
v_lshlrev_b32 v40, 4, v40
v_lshlrev_b32 v40, s35, v40
v_lshl_add_u32 v40, v4, 2, v40
v_lshrrev_b32 v41, 4, v0
v_lshlrev_b32 v41, 7, v41
v_lshl_add_u32 v41, v4, 5, v41
v_and_b32 v42, 31, v0
v_lshlrev_b32 v42, 2, v42
v_bfe_u32 v43, v0, 5, 1
v_mul_u32_u24 v43, %d, v43
v_add_u32 v42, v42, v43
''' % (WS_PAR, WS_MOD - 2 * 1792, f32(CS), 14 * 128))
    for i in range(4):
        c, t = 8 + i, 12 + i
        A.e('''
v_lshlrev_b32 v{c}, 16, v{c}
v_mul_f32 v{t}, {k}, v{c}
v_exp_f32 v{t}, v{t}
v_add_f32 v{t}, 1.0, v{t}
v_rcp_f32 v{t}, v{t}
v_mul_f32 v{c}, v{c}, v{t}
v_cvt_pk_bf16_f32 v{c}, v{c}, v{c}
v_lshlrev_b32 v{c}, 16, v{c}
'''.format(c=c, t=t, k=f32(-1.4426950408889634)))
    for i in range(4):
        for d in range(4):
            w = 16 + 4 * i + d
            A.e('v_lshlrev_b32 v44, 16, v%d' % w)
            A.e('v_and_b32 v45, 0xffff0000, v%d' % w)
            if i == 0:
                A.e('v_mul_f32 v%d, v44, v8\nv_mul_f32 v%d, v45, v8' % (32 + 2 * d, 33 + 2 * d))
            else:
                A.e('v_fmac_f32 v%d, v44, v%d\nv_fmac_f32 v%d, v45, v%d' % (32 + 2 * d, 8 + i, 33 + 2 * d, 8 + i))
    for rot in (4, 8):
        for j in range(8):
            A.e('v_add_f32_dpp v%d, v%d, v%d row_ror:%d row_mask:0xf bank_mask:0xf' % (32 + j, 32 + j, 32 + j, rot))
    A.e('''
s_mov_b32 exec_lo, 0x000f000f
s_mov_b32 exec_hi, 0x000f000f
ds_write_b128 v41, v[32:35]
ds_write_b128 v41, v[36:39] offset:16
s_mov_b64 exec, -1
s_waitcnt lgkmcnt(0)
s_barrier
s_cmp_lg_u32 s3, 0
s_cbranch_scc1 L1_end
''')
    for j in range(14):
        A.e('ds_read_b32 v%d, v42 offset:%d' % (16 + j, 128 * j))
    for j in range(1, 14):
        A.e('v_add_f32 v16, v16, v%d' % (16 + j))
    A.e('''
v_mov_b32 v17, v16
v_permlane32_swap_b32 v16, v17
v_add_f32 v16, v16, v17
v_cvt_pk_bf16_f32 v16, v16, v16
v_lshlrev_b32 v16, 16, v16
v_add_f32 v16, s37, v16
v_cvt_pk_bf16_f32 v16, v16, v16
v_lshlrev_b32 v16, 16, v16
v_mul_f32 v16, s36, v16
buffer_store_dword v16, v40, s[12:15], s32 offen
s_endpgm
''')
    B = Prog()
    B.e('''
L1_ln:
s_sub_u32 s16, s2, 84
v_and_b32 v3, 15, v0
v_bfe_u32 v4, v0, 4, 1
v_bfe_u32 v5, v0, 5, 1
v_mul_u32_u24 v6, 896, v3
v_lshl_add_u32 v7, v4, 5, v6
v_lshl_add_u32 v7, v5, 4, v7
s_mul_i32 s17, s16, 14336
s_lshl_b32 s18, s3, 7
s_add_u32 s18, s18, s17
s_lshl_b32 s19, s3, 11
s_add_u32 s19, s19, s17
s_mov_b32 s6, %d
v_lshlrev_b32 v40, 4, v2
v_lshlrev_b32 v41, 6, v3
v_lshl_add_u32 v42, v1, 3, v41
s_waitcnt lgkmcnt(0)
s_mov_b32 s4, s20
s_mov_b32 s5, s21
s_mov_b32 s12, s28
s_mov_b32 s13, s29
buffer_load_ushort v8, v6, s[4:7], s17 offen
buffer_load_dwordx4 v[24:27], v7, s[4:7], s18 offen
buffer_load_dwordx4 v[28:31], v7, s[4:7], s18 offen offset:64
''' % ACT)
    prefetch(B, pf, cpf, 'b')
    B.e('''
s_mul_i32 s30, s16, 1792
s_add_u32 s30, s30, %d
v_lshlrev_b32 v62, 2, v0
v_mov_b32 v63, 0
buffer_store_dword v63, v62, s[12:15], s30 offen
''' % WS_FLG)
    B.e('v_lshlrev_b32 v8, 16, v8')
    for d in range(8):
        w = 24 + d
        a, b = 44 + 2 * d, 45 + 2 * d
        B.e('v_lshlrev_b32 v%d, 16, v%d\nv_and_b32 v%d, 0xffff0000, v%d' % (a, w, b, w))
        B.e('v_sub_f32 v%d, v%d, v8\nv_sub_f32 v%d, v%d, v8' % (a, a, b, b))
        if d == 0:
            B.e('v_add_f32 v10, v%d, v%d\nv_mul_f32 v11, v%d, v%d\nv_fmac_f32 v11, v%d, v%d' % (a, b, a, a, b, b))
        else:
            B.e('v_add_f32 v10, v10, v%d\nv_fmac_f32 v11, v%d, v%d\nv_add_f32 v10, v10, v%d\nv_fmac_f32 v11, v%d, v%d' % (a, a, a, b, b, b))
    for sw in ('32', '16'):
        B.e('''
v_mov_b32 v12, v10
v_mov_b32 v13, v11
v_permlane{s}_swap_b32 v10, v12
v_permlane{s}_swap_b32 v11, v13
v_add_f32 v10, v10, v12
v_add_f32 v11, v11, v13
'''.format(s=sw))
    B.e('''
ds_write_b64 v42, v[10:11]
s_waitcnt lgkmcnt(0)
s_barrier
ds_read_b128 v[12:15], v41
ds_read_b128 v[16:19], v41 offset:16
ds_read_b128 v[20:23], v41 offset:32
ds_read_b64 v[10:11], v41 offset:48
''')
    for j in range(6):
        B.e('v_add_f32 v10, v10, v%d\nv_add_f32 v11, v11, v%d' % (12 + 2 * j, 13 + 2 * j))
    B.e('''
v_mul_f32 v10, {inv}, v10
v_mul_f32 v11, {inv}, v11
v_fma_f32 v11, -v10, v10, v11
v_max_f32 v11, 0, v11
v_add_f32 v11, {eps}, v11
v_rsq_f32 v11, v11
v_mul_f32 v10, v10, v11
'''.format(inv=f32(1.0 / 448), eps=f32(1e-5)))
    for d in range(8):
        a, b = 44 + 2 * d, 45 + 2 * d
        B.e('v_fma_f32 v%d, v%d, v11, -v10\nv_fma_f32 v%d, v%d, v11, -v10' % (a, a, b, b))
        B.e('v_cvt_pk_f16_f32 v%d, v%d, v%d' % (24 + d, a, b))
    for k in range(2):
        for i in range(2):
            B.e('v_permlane16_swap_b32 v%d, v%d' % (24 + 4 * k + i, 26 + 4 * k + i))
    B.e('''
buffer_store_dwordx4 v[24:27], v40, s[12:15], s19 offen
buffer_store_dwordx4 v[28:31], v40, s[12:15], s19 offen offset:1024
L1_end:
s_endpgm
''')
    P = Prog()
    P.ext(fix_hazards(H.ins))
    P.ext(finish(A))
    P.ext(finish(B))
    if stamps:
        P.ins = add_stamps(P.ins, Ins, [], 12, 3, 1)
    return khead(kname) + P.text(), kernel_desc(kname, 64, 64), '; @launch kernel=%s grid=(212,1,1) block=(448,1,1) lds=4096' % kname
```

```python
import sys
from asmlib import *
from sched2 import *
from common import *
import gen_tail

TILE, STAGE, SETB = 17024, 34048, 68096
PAR = 136192
FLAG = PAR + 16384
LDS_BYTES = FLAG + 64
MF = 'v_mfma_f32_16x16x32_bf16'


class Cfg:
    LEAD = 24
    RW = 7
    DSTEP = 4.0
    DSTEP2 = 3.0
    BAR0 = 30
    XT = 50
    PRE_X = 2
    PRE_D1 = False
    NMID = 9
    stamps = False
    store_flags = ' sc1'
    warm = True
    verbose = False
    pf = 7
    PFP = 2
    stamp_gaps = [0, 512, 896, 1409]
    xdrop = ''
    E3 = 0


vV, vK = [1, 2], [3, 4]
vGq, vG, vP, vX = 5, 6, 7, 8
vT = [10, 11, 12, 13]
vW = 9
vFL = [250, 251]
vB0 = 15
vGo = 0
SB = [16, 48]
NEGM = 80
vL = [88, 89, 90, 91]
vM = [92, 93, 94, 95]
vO = 96
vF = 104
PR = 112
ACC = 128
QA = 128
sK, sV, sWQ, sWO, sWS = 4, 8, 12, 16, 20
sOK, sOV = 24, 32
sMK, sMV, sMO = 40, 41, 42
sT = [43, 44, 45, 46]
sT2 = [96, 97, 98, 99]
sWM = 76
sCNT, sW, sPASS, sXH, sSL, sLI, sBAD = 47, 48, 49, 50, 51, 52, 53
sWK, sWV, sWW, sWO2, sWQ2 = 54, 55, 56, 57, 58
IMMK = [0, 1024, 2064, 3088]
IMMV = [0, 1024, 2176, 3200]
ROWJ = [0, 8, 4, 12]


def hreg(ks, rb):
    return 16 + ((ks >> 1) % 6) * 16 + ((ks & 1) * 2 + rb) * 4


def acc(db, rb):
    return ACC + (db >> 1) * 16 + rb * 8 + (db & 1) * 4


def sreg(buf, kb, rb):
    return SB[buf] + ((kb >> 1) * 2 + rb) * 8 + (kb & 1) * 4


class G:
    def __init__(self, C):
        self.C = C
        self.ops = []
        self.tn = [0, 0]

    def op(self, text, tag=None, **kw):
        o = Op(Ins(text, tag), **kw)
        self.ops.append(o)
        return o

    def stemp(self, k=0):
        self.tn[k] += 1
        return (sT, sT2)[k][self.tn[k] % 4]


def stage_of(pair, k):
    a, b = pair
    ph = pair[k]
    if ph[0] == 'K':
        return 0
    if ph[0] == 'V':
        return 1
    other = pair[1 - k]
    if other[0] == 'K':
        return 1
    if other[0] == 'V':
        return 0
    return k


def dma_list(pair, p, g):
    L = []
    z = p & 1
    bump = False
    for k in range(2):
        ph = pair[k]
        base = z * SETB + stage_of(pair, k) * STAGE
        for half in range(2):
            for j in range(4):
                sc = []
                if ph[0] == 'K':
                    if j == 0:
                        sc.append('s_add_u32 m0, s%d, %d' % (sMK, base + half * TILE))
                    d = 'buffer_load_dwordx4 v%d, %s, s%d offen offset:%d lds' % (vG, sr(sK, 4), sOK + half * 4 + j, IMMK[j])
                    bump = True
                elif ph[0] == 'V':
                    if j == 0:
                        sc.append('s_add_u32 m0, s%d, %d' % (sMV, base + half * TILE))
                    d = 'buffer_load_dwordx4 v%d, %s, s%d offen offset:%d lds' % (vG, sr(sV, 4), sOV + half * 4 + j, IMMV[j])
                    bump = True
                elif ph[0] == 'Q':
                    if j == 0:
                        sc.append('s_add_u32 m0, s%d, %d' % (sMV, base + half * TILE))
                    t = g.stemp()
                    sc.append('s_mov_b32 s%d, %d' % (t, (64 * ph[1] + 32 * half + ROWJ[j]) * 8192 - IMMV[j]))
                    d = 'buffer_load_dwordx4 v%d, %s, s%d offen offset:%d lds' % (vGq, sr(sWQ, 4), t, IMMV[j])
                else:
                    if j == 0:
                        sc.append('s_add_u32 m0, s%d, %d' % (sMO, base + half * 4096))
                    t = g.stemp()
                    sc.append('s_mov_b32 s%d, %d' % (t, (half * 4 + j) * 7168 - j * 1024 + 128 * ph[1]))
                    d = 'buffer_load_dwordx4 v%d, %s, s%d offen offset:%d lds' % (vGo, sr(sWO, 4), t, j * 1024)
                L.append((sc, d))
    return L, bump


def xh_load(g, ks, rb):
    t = g.stemp(1)
    return ('s_add_u32 s%d, s%d, %d' % (t, sXH, rb * 14336 + (ks & ~3) * 1024),
            'buffer_load_dwordx4 %s, v%d, %s, s%d offen offset:%d' % (vr(hreg(ks, rb), 4), vX, sr(sWS, 4), t, (ks & 3) * 1024))


def modulate(ks, pr, temps):
    out = []
    n = 0
    for hf in range(2):
        rd = ['ds_read_b128 %s, v%d offset:%d' % (vr(pr + hf * 8 + 4 * i, 4), vP, ks * 256 + hf * 32 + 16 * i) for i in range(2)]
        va = []
        for rb in range(2):
            for dd in range(2):
                h = hreg(ks, rb) + 2 * hf + dd
                t0, t1 = temps[(2 * n) % len(temps)], temps[(2 * n + 1) % len(temps)]
                n += 1
                c = pr + hf * 8 + 2 * dd
                va.append('v_fma_mix_f32 v%d, v%d, v%d, v%d op_sel_hi:[1,0,0]' % (t0, h, c, c + 4))
                va.append('v_fma_mix_f32 v%d, v%d, v%d, v%d op_sel:[1,0,0] op_sel_hi:[1,0,0]' % (t1, h, c + 1, c + 5))
                va.append('v_cvt_pk_bf16_f32 v%d, v%d, v%d' % (h, t0, t1))
        out.append((rd, va))
    return out


def build(C):
    g = G(C)
    NM = C.NMID
    pairs = [(('Q', 0), ('Q', 1)), (('Q', 2), ('Q', 3)), (('Q', 4), ('Q', 5)), (('Q', 6), ('K', 0))]
    pairs += [(('K', t + 1), ('V', t)) for t in range(NM)]
    pairs += [(('V', NM), ('O', 0)), (('O', 1), ('O', 2)), (('O', 3), ('O', 4)), (('O', 5), ('O', 6))]
    NP = len(pairs)
    bar = lambda p: 128 * p + 128 - C.LEAD
    for p, pair in enumerate(pairs):
        z = p & 1
        g0 = 128 * p
        wlo = bar(p - 1) + 1 if p else -30
        whi = bar(p) - C.RW if p + 1 < NP else g0 + 110
        if p < NP - 1:
            L, bump = dma_list(pairs[p + 1], p + 1, g)
            tg = 10
            if p == 0 and C.PRE_D1:
                L = []
            step = C.DSTEP if pair[0][0] == 'K' else C.DSTEP2
            dlo = max(wlo, 2)
            for n, (sc, d) in enumerate(L):
                tg = dlo + 1 + int(n * step)
                for s in sc:
                    g.op(s, tgt=tg - 3, lo=max(dlo - 3, 0))
                g.op(d, tag='D%d' % (p + 1), tgt=tg, lo=dlo, hi=bar(p) - 30, early=False)
            if bump:
                g.op('v_add_u32 v%d, 0x8000, v%d' % (vG, vG), tgt=tg + 2)
            if C.warm and p in (0, 2, 4, 6):
                k = p // 2
                t = sWV
                g.op('s_add_u32 s%d, s%d, %d' % (t, sWK, k * 262144), tgt=tg, lo=tg - 4)
                g.op('buffer_load_dword a%d, v%d, %s, s%d offen' % (244 + k, vW, sr(sWM, 4), t), tgt=tg + 3, lo=tg + 1, early=False)
        if p == 0:
            g.op('s_waitcnt vmcnt(@D0b)', gap=C.BAR0)
            g.op('s_barrier', gap=C.BAR0 + 1)
        if p == NM + 2 and C.warm:
            g.op('buffer_load_dword a248, v%d, %s, s%d offen' % (vW, sr(sWO, 4), sWO2), tgt=g0 + 52, early=False)
        if p == NM + C.PFP and C.pf:
            a, b = vF, vF + 1
            g.op('v_lshrrev_b32 v%d, 8, v%d' % (a, vX), tgt=g0 + 40, lo=g0 + 20)
            g.op('v_mul_u32_u24 v%d, 3584, v%d' % (a, a), tgt=g0 + 40)
            g.op('v_lshlrev_b32 v%d, 3, v%d' % (b, vX), tgt=g0 + 40, lo=g0 + 20)
            g.op('v_and_b32 v%d, 0x780, v%d' % (vF + 2, b), tgt=g0 + 40)
            g.op('v_add_u32 v%d, v%d, v%d' % (a, a, vF + 2), tgt=g0 + 40)
            for n, (r, srd, so) in enumerate([(a, 60, 72), (a, 64, 72), (b, 68, 73), (b, 68, 74), (b, 92, 73)]):
                if C.pf & (1 << (n // 2)):
                    g.op('buffer_load_dword a%d, v%d, %s, s%d offen' % (239 + n, r, sr(srd, 4), so), tgt=g0 + 56 + 6 * n, early=False)
        if p >= 5 and p & 1 and p <= NM + 2:
            g.op('s_cbranch_scc1 L_loop', gap=g0, tag='blk')
            g.op('s_sub_u32 s%d, s%d, 1' % (sCNT, sCNT), gap=g0 + 254)
            g.op('s_cmp_lg_u32 s%d, 0' % sCNT, gap=g0 + 255)
        units = 0.0
        for k in range(2):
            ph = pair[k]
            typ, idx = ph
            b0 = g0 + 64 * k
            st = stage_of(pair, k) * STAGE
            if typ in 'QV':
                if typ == 'Q' and idx == 6:
                    order = [(db, rb, kt) for rb in range(2) for db in range(16) for kt in range(2)]
                else:
                    order = [(db, rb, kt) for db in range(16) for rb in range(2) for kt in range(2)]
            elif typ == 'K' and idx == 0:
                order = [(kb, rb, ks) for kt in range(2) for rb in range(2) for kb in (2 * kt, 2 * kt + 1) for ks in range(8)]
            else:
                order = [(kb, rb, ks) for kb in range(4) for rb in range(2) for ks in range(8)]
            if typ == 'O' and idx == 0:
                for t in gen_tail.rp_addr(None, gen_tail.vRP, 11) + ['s_add_u32 s%d, s%d, 14336' % (sWV, sSL)]:
                    g.op(t, tgt=g0 - 50, lo=g0 - 100)
                for s in range(2):
                    for cb in range(4):
                        r = vO + s * 4 + cb
                        if cb == 0:
                            g.op('v_add_u32 v%d, %d, v%d' % (r, s * SETB, vB0), tgt=g0 - 60)
                        else:
                            g.op('v_xor_b32 v%d, %d, v%d' % (r, cb * 32, vO + s * 4), tgt=g0 - 60)
            for f in range(32):
                tg = lambda: wlo + int(units * (whi - wlo) / 128.0)
                if p == 0 and k == 1:
                    wlo = C.BAR0 + 1
                    tg = lambda: wlo + int((units - 64) * (whi - wlo) / 64.0)
                if typ == 'K':
                    kb, ks = f >> 3, f & 7
                    g.op('ds_read_b128 %s, v%d offset:%d' % (ar(4 * f, 4), vK[z], st + (kb >> 1) * TILE + (kb & 1) * 512 + ks * 64),
                         tgt=tg(), lo=wlo, hi=whi, early=False)
                    units += 2
                else:
                    for u in range(2):
                        if typ == 'O':
                            cb, ks = f >> 3, f & 7
                            a, off = vO + z * 4 + cb, st + ks * 4096 + u * 2048
                        else:
                            db, kt = f >> 1, f & 1
                            a, off = vV[z], st + kt * TILE + u * 512 + db * 32
                        g.op('ds_read_b64_tr_b16 %s, v%d offset:%d' % (ar(4 * f + 2 * u, 2), a, off), tgt=tg(), lo=wlo, hi=whi, early=False)
                        units += 1
            if typ == 'Q' and idx >= 1:
                W = 62
                if idx >= C.PRE_X:
                    for n, (ks, rb) in enumerate([(2 * idx, 0), (2 * idx, 1), (2 * idx + 1, 0), (2 * idx + 1, 1)]):
                        s, d = xh_load(g, ks, rb)
                        tg0 = max(1, (idx - 1) * W - C.XT) + 3 * n
                        g.op(s, tgt=tg0 - 1, lo=max(0, tg0 - 4))
                        g.op(d, tgt=tg0, lo=0, early=False)
                n = 0
                for ks in (2 * idx, 2 * idx + 1):
                    for rd, va in modulate(ks, PR, vT):
                        for t in rd:
                            g.op(t, tgt=(idx - 1) * W + n * W // 48 - 12, lo=C.BAR0 + 1 if idx > 1 else -BIG)
                        for t in va:
                            g.op(t, tgt=(idx - 1) * W + n * W // 48, lo=max(0, (idx - 1) * W - 10))
                            n += 1
            if typ == 'K' and idx == 0:
                for r in vL:
                    g.op('v_mov_b32 v%d, 0' % r, tgt=g0)
            done = {}
            for m, (x, rb, y) in enumerate(order):
                if typ in 'QV':
                    d = vr(acc(x, rb), 4)
                    a = ar(4 * (2 * x + y), 4)
                    b = vr(hreg(2 * idx + y, rb), 4) if typ == 'Q' else vr(SB[idx & 1] + (y * 2 + rb) * 8, 4)
                    c = '0' if idx == 0 and y == 0 else d
                else:
                    d = vr(sreg(idx & 1, x, rb), 4)
                    a = ar(4 * (8 * x + y), 4)
                    if typ == 'K':
                        b = ar(QA + (y * 2 + rb) * 4, 4)
                        c = d if y else ('0' if idx == 0 and x < 2 else vr(NEGM + 4 * rb, 4))
                    else:
                        b = vr(ACC + y * 16 + rb * 8, 4)
                        c = d if y else '0'
                g.op('%s %s, %s, %s, %s' % (MF, d, a, b, c), gap=b0 + m, tag=('G', b0 + m))
                if typ == 'K' and idx == 0 and x == 1 and y == 7:
                    s = SB[0] + rb * 8
                    m0_, m1_ = vM[2 * rb], vM[2 * rb + 1]
                    T = ['v_accvgpr_read_b32 v%d, a%d' % (m0_, vFL[rb]), 'v_max3_f32 v%d, v%d, v%d, v%d' % (m0_, s, s + 1, m0_)]
                    T += ['v_max3_f32 v%d, v%d, v%d, v%d' % (m0_, m0_, s + i, s + i + 1) for i in (2, 4, 6)]
                    for sw in ('32', '16'):
                        T += ['v_mov_b32 v%d, v%d' % (m1_, m0_), 'v_permlane%s_swap_b32 v%d, v%d' % (sw, m0_, m1_),
                              'v_max_f32 v%d, v%d, v%d' % (m0_, m0_, m1_)]
                    T += ['v_sub_f32 v%d, 0, v%d' % (NEGM + 4 * rb + i, m0_) for i in range(4)]
                    for t in T:
                        g.op(t, tgt=b0)
            if typ == 'Q' and idx == 6:
                for rb in range(2):
                    for e in range(8):
                        r = ACC + e * 16 + rb * 8
                        tg = b0 + rb * 32 + e * 4 + 8
                        for i in range(4):
                            g.op('v_cvt_pk_bf16_f32 v%d, v%d, v%d' % (r + i, r + 2 * i, r + 2 * i + 1), tgt=tg)
                        for i in range(2):
                            g.op('v_permlane16_swap_b32 v%d, v%d' % (r + i, r + 2 + i), tgt=tg)
                        for i in range(4):
                            g.op('v_accvgpr_write_b32 a%d, v%d' % (QA + (e * 2 + rb) * 4 + i, r + i), tgt=tg)
            if typ == 'K':
                T = []
                for kt in range(2):
                    for half in range(2):
                        for rb in range(2):
                            if idx == 0:
                                half_, rb_ = rb, half
                            else:
                                half_, rb_ = half, rb
                            r = SB[idx & 1] + (kt * 2 + rb_) * 8
                            for i in (2 * half_, 2 * half_ + 1):
                                a, b = r + 2 * i, r + 2 * i + 1
                                if idx == 0 and kt == 0:
                                    T += ['v_add_f32 v%d, v%d, v%d' % (x, x, NEGM + 4 * rb_) for x in (a, b)]
                                T += ['v_exp_f32 v%d, v%d' % (a, a), 'v_exp_f32 v%d, v%d' % (b, b),
                                      'v_add_f32 v%d, v%d, v%d' % (vL[2 * rb_], vL[2 * rb_], a),
                                      'v_add_f32 v%d, v%d, v%d' % (vL[2 * rb_ + 1], vL[2 * rb_ + 1], b),
                                      'v_cvt_pk_bf16_f32 v%d, v%d, v%d' % (r + i, a, b)]
                span, off = (96, 28) if idx == 0 else (128, 30)
                if idx == NM:
                    span, off = 100, 20
                for n, t in enumerate(T):
                    g.op(t, tgt=b0 + off + n * span // len(T))
                if idx == NM:
                    T = []
                    for rb in range(2):
                        a, b = vL[2 * rb], vL[2 * rb + 1]
                        T += ['v_add_f32 v%d, v%d, v%d' % (a, a, b)]
                        for sw in ('32', '16'):
                            T += ['v_mov_b32 v%d, v%d' % (b, a), 'v_permlane%s_swap_b32 v%d, v%d' % (sw, a, b),
                                  'v_add_f32 v%d, v%d, v%d' % (a, a, b)]
                        T += ['v_rcp_f32 v%d, v%d' % (b, a)]
                    T += ['v_add_f32 v%d, v%d, v%d' % (vM[1], vL[0], vL[2]),
                          'v_cmp_ngt_f32 vcc, 0x5f800000, v%d' % vM[1],
                          's_or_b32 s%d, vcc_lo, vcc_hi' % sBAD,
                          'v_mov_b32 v%d, s%d' % (vM[1], sBAD),
                          'v_mov_b32 v%d, s%d' % (vM[2], sWW),
                          'ds_write_b32 v%d, v%d' % (vM[2], vM[1])]
                    for n, t in enumerate(T):
                        g.op(t, tgt=b0 + 140 + n, hi=bar(p + 1) - C.RW)
                    g.op('v_mov_b32 v%d, %d' % (vM[3], FLAG), tgt=b0 + 150)
                    g.op('ds_read_b128 %s, v%d' % (vr(vF, 4), vM[3]), lo=bar(p + 1) + 1, tgt=bar(p + 1) + 10)
            if typ == 'V' and idx == NM:
                for e in range(8):
                    for rb in range(2):
                        r = ACC + e * 16 + rb * 8
                        for i in range(4):
                            g.op('v_cvt_pk_bf16_f32 v%d, v%d, v%d' % (r + i, r + 2 * i, r + 2 * i + 1), tgt=b0 + e * 8 + 10)
            if typ == 'O':
                for cp in range(2):
                    for rb in range(2):
                        r = SB[idx & 1] + (cp * 2 + rb) * 8
                        tg = b0 + cp * 32 + rb * 8 + 28
                        for i in range(8):
                            g.op('v_mul_f32 v%d, v%d, v%d' % (r + i, r + i, vL[2 * rb + 1]), tgt=tg - (16 if i < 4 else 0))
                        for i in range(4):
                            g.op('v_cvt_pk_bf16_f32 v%d, v%d, v%d' % (r + i, r + 2 * i, r + 2 * i + 1), tgt=tg)
                        kk = 2 * idx + cp
                        g.op('buffer_store_dwordx4 %s, v%d, %s, s%d offen offset:%d%s' % (vr(r, 4), gen_tail.vRP, sr(sWS, 4), (sSL, sWV)[rb], kk * 128, C.store_flags), tgt=tg + 3)
        if p == NP - 1:
            A, L = gen_tail.s3_early()
            for n, t in enumerate(A):
                g.op(t, tgt=g0 - 40 + n, lo=g0 - 60)
            for n, t in enumerate(L):
                g.op(t, tgt=g0 + C.E3 + 3 * n, lo=g0 - 10, early=False)
        if p + 1 < NP:
            g.op('s_waitcnt vmcnt(@D%d) lgkmcnt(0)' % (p + 1), gap=bar(p))
            g.op('s_barrier', gap=bar(p) + 1)
    return g, pairs


def gen(C, CT, kname='k2_kernel'):
    g, pairs = build(C)
    NP = len(pairs)
    NM = C.NMID
    logical = list(g.ops)
    pre, gaps, post = schedule(g.ops, NP * 128, 'k2')
    lin = pre + flatten(gaps) + post
    verify(logical, lin)
    if C.verbose:
        for p in range(NP):
            gg = gaps[128 * p:128 * p + 128]
            pat = ' '.join(''.join(o.cls for o in sc + vec) or '.' for m, sc, vec in gg)
            print(p, pairs[p], model_cycles([o.ins for o in flatten(gg)]), pat, file=sys.stderr)
    P = Prog()
    P.e("""
s_cmp_ge_u32 s2, 256
s_cbranch_scc1 L2_end
s_load_dwordx4 s[60:63], s[0:1], 8
s_load_dwordx4 s[64:67], s[0:1], 24
s_load_dwordx2 s[68:69], s[0:1], 104
s_load_dwordx4 s[92:95], s[0:1], 48
s_load_dwordx2 s[96:97], s[0:1], 64
s_load_dwordx2 s[98:99], s[0:1], 0
""")
    if C.stamps:
        P.e('s_memtime s[80:81]\ns_memrealtime s[100:101]')
    P.e("""
v_lshrrev_b32 v20, 6, v0
v_and_b32 v21, 63, v0
v_and_b32 v22, 15, v0
v_readfirstlane_b32 s48, v20
v_bfe_u32 v23, v0, 4, 2
v_bfe_u32 v24, v0, 5, 1
v_and_b32 v25, 31, v0
v_lshlrev_b32 v8, 4, v21
s_and_b32 s70, s2, 7
s_lshr_b32 s71, s2, 3
s_and_b32 s72, s71, 1
s_lshl_b32 s73, s70, 1
s_add_u32 s72, s72, s73
s_lshr_b32 s73, s71, 1
s_lshl_b32 s74, s73, 3
s_lshl_b32 s75, s48, 1
s_add_u32 s74, s74, s75
s_mul_i32 s50, s74, 14336
s_mul_i32 s51, s72, %d
s_add_u32 s51, s51, s50
s_add_u32 s51, s51, %d
s_mul_i32 s40, s48, 4160
s_mul_i32 s41, s48, 4256
s_lshl_b32 s42, s48, 13
s_lshl_b32 s59, s48, 12
s_add_u32 s59, s59, %d
s_lshl_b32 s56, s48, 2
s_add_u32 s56, s56, %d
s_lshl_b32 s54, s71, 13
s_and_b32 s55, s48, 1
s_lshl_b32 s55, s55, 12
s_add_u32 s54, s54, s55
s_mul_i32 s57, s74, 1792
s_mul_i32 s58, s74, 28672
s_mov_b32 s49, 0
""" % (ACT, WS_SLAB, PAR, FLAG))
    for half in range(2):
        for j in range(4):
            P.e('s_mov_b32 s%d, %d' % (sOK + half * 4 + j, half * 16384 + ROWJ[j] * 512 - IMMK[j] + 16))
            P.e('s_mov_b32 s%d, %d' % (sOV + half * 4 + j, half * 16384 + ROWJ[j] * 512 - IMMV[j] + 128))
    P.e("""
v_lshl_add_u32 v26, v24, 4, v20
v_lshlrev_b32 v27, 4, v25
v_lshl_add_u32 v6, v26, 9, v27
v_lshl_add_u32 v5, v26, 13, v27
v_accvgpr_write_b32 a252, v6
v_lshl_add_u32 v7, v23, 6, s59
v_mov_b32 v13, 0xff800000
v_lshlrev_b32 v9, 6, v21
v_accvgpr_write_b32 a250, v13
v_accvgpr_write_b32 a251, v13
v_lshrrev_b32 v26, 2, v22
v_mul_u32_u24 v1, 4256, v26
v_and_b32 v27, 1, v23
v_mul_u32_u24 v28, 2176, v27
v_add_u32 v1, v1, v28
v_lshrrev_b32 v28, 1, v23
v_lshl_add_u32 v1, v28, 10, v1
v_and_b32 v29, 3, v22
v_lshl_add_u32 v1, v29, 3, v1
v_add_u32 v2, %d, v1
v_mul_u32_u24 v3, 4160, v29
v_and_b32 v30, 1, v26
v_mul_u32_u24 v30, 2064, v30
v_add_u32 v3, v3, v30
v_lshrrev_b32 v30, 3, v22
v_lshl_add_u32 v3, v30, 10, v3
v_lshl_add_u32 v3, v27, 5, v3
v_lshl_add_u32 v3, v28, 4, v3
v_add_u32 v4, %d, v3
v_lshl_add_u32 v30, v23, 2, v26
v_lshlrev_b32 v15, 7, v30
v_bfe_u32 v30, v30, 1, 2
v_lshl_add_u32 v15, v30, 5, v15
v_lshl_add_u32 v15, v29, 3, v15
v_lshrrev_b32 v30, 3, v21
v_and_b32 v26, 7, v21
v_lshlrev_b32 v14, 13, v30
v_lshl_add_u32 v14, v26, 6, v14
v_lshl_add_u32 v30, v20, 6, v30
v_mul_u32_u24 v30, 896, v30
v_lshlrev_b32 v31, 1, v23
v_xor_b32 v31, v31, v26
v_lshl_add_u32 v0, v31, 4, v30
s_lshl_b32 s70, s70, 20
s_lshl_b32 s71, s72, 9
s_mul_i32 s72, s72, 229376
s_waitcnt lgkmcnt(0)
s_add_u32 s12, s64, s71
s_addc_u32 s13, s65, 0
s_sub_u32 s14, %d, s71
s_mov_b32 s15, 0x20000
s_mov_b32 s20, s68
s_mov_b32 s21, s69
s_mov_b32 s22, %d
s_mov_b32 s23, 0x20000
s_add_u32 s4, s60, s70
s_addc_u32 s5, s61, 0
s_sub_u32 s4, s4, 16
s_subb_u32 s5, s5, 0
s_mov_b32 s6, 0x100010
s_mov_b32 s7, 0x20000
s_add_u32 s8, s62, s70
s_addc_u32 s9, s63, 0
s_sub_u32 s8, s8, 0x8080
s_subb_u32 s9, s9, 0
s_mov_b32 s10, 0x108080
s_mov_b32 s11, 0x20000
s_add_u32 s16, s66, s72
s_addc_u32 s17, s67, 0
s_mov_b32 s18, 229376
s_mov_b32 s19, 0x20000
""" % (SETB, SETB, 448 * 8192, WS_SIZE))
    P.e("""
s_cmp_lt_u32 s48, 2
s_cselect_b32 s76, s60, s62
s_cselect_b32 s77, s61, s63
s_add_u32 s76, s76, s70
s_addc_u32 s77, s77, 0
s_mov_b32 s78, 0x100000
s_mov_b32 s79, 0x20000
s_mov_b32 s60, s92
s_mov_b32 s61, s93
s_mov_b32 s62, 1605632
s_mov_b32 s63, 0x20000
s_mov_b32 s64, s94
s_mov_b32 s65, s95
s_mov_b32 s66, 1605632
s_mov_b32 s67, 0x20000
s_mov_b32 s3, s98
s_mov_b32 s52, s99
s_mov_b32 s68, s96
s_mov_b32 s69, s97
s_mov_b32 s70, 1605632
s_mov_b32 s71, 0x20000
s_lshr_b32 s72, s2, 3
s_lshl_b32 s72, s72, 2
s_add_u32 s72, s72, s48
s_lshl_b32 s73, s72, 13
s_add_u32 s74, s73, 0x100000
s_mul_i32 s72, s72, 14336
s_and_b32 s75, s2, 1
s_mul_i32 s75, s75, 1792
s_add_u32 s72, s72, s75
s_getpc_b64 s[92:93]
L2_pc:
s_add_u32 s92, s92, L2_tail-L2_pc
s_addc_u32 s93, s93, 0
s_mov_b32 s94, L2_end-L2_tail
s_mov_b32 s95, 0x20000
L2_restart:
""")
    Q = Prog()
    Q.e('s_mov_b32 m0, s59\ns_mov_b32 s43, %d' % WS_PAR)
    Q.e('buffer_load_dwordx4 v8, s[20:23], s43 offen lds', tag='PAR')
    L, _ = dma_list(pairs[0], 0, g)
    for half in range(2):
        for ks in (2 * half, 2 * half + 1):
            for rb in range(2):
                s, d = xh_load(g, ks, rb)
                Q.e(s)
                Q.e(d)
        for sc, d in L[8 * half:8 * half + 8]:
            for s in sc:
                Q.e(s)
            Q.e(d, tag='D0' + 'ab'[half])
    Q.e('s_mov_b32 m0, s59\ns_mov_b32 s43, %d' % WS_PAR)
    for j in range(1, 4):
        Q.e('buffer_load_dwordx4 v8, s[20:23], s43 offen offset:%d lds' % (1024 * j), tag='D0b')
    if C.warm:
        Q.e('buffer_load_dword a249, v14, s[12:15], s58 offen')
    Q.e('s_waitcnt vmcnt(@PAR)')
    for ks in range(2):
        for rd, va in modulate(ks, ACC + 16 * ks, vT):
            for t in rd:
                Q.e(t)
    tmp = list(range(200, 216))
    for ks in range(2):
        for rd, va in modulate(ks, ACC + 16 * ks, tmp):
            for t in [x for x in va if 'fma' in x] + [x for x in va if 'cvt' in x]:
                Q.e(t)
    for ks in range(4, 2 * C.PRE_X):
        for rb in range(2):
            s, d = xh_load(g, ks, rb)
            Q.e(s)
            Q.e(d)
        if ks == 5 and C.PRE_D1:
            for sc, d in dma_list(pairs[1], 1, g)[0]:
                for s in sc:
                    Q.e(s)
                Q.e(d, tag='D1')
    Q.e('s_waitcnt vmcnt(@D0a)\ns_barrier')
    Q.e('; T1')
    Q.ext([o.ins for o in pre])
    Q.e('s_mov_b32 s%d, NTRIPS' % sCNT)
    Q.ext([o.ins for o in flatten(gaps)])
    Q.e('s_nop 7')
    Q.ext([o.ins for o in post])
    Q.e('v_or3_b32 v%d, v%d, v%d, v%d' % (vF, vF, vF + 1, vF + 2))
    Q.e('v_or_b32 v%d, v%d, v%d' % (vF, vF, vF + 3))
    Q.e('s_nop 0\nv_readfirstlane_b32 s%d, v%d' % (sBAD, vF))
    seq, _, _ = add_waits(Q.ins)
    cuts = [n for n, i in enumerate(seq) if i.tag == 'blk']
    blocks = [seq[cuts[k] + 1:cuts[k + 1]] for k in range(len(cuts) - 1)]
    txt = [[i.text for i in b] for b in blocks]
    k0 = next(k for k in range(len(blocks) - 1) if all(txt[k] == txt[j] for j in range(k, len(blocks))))
    assert len(blocks) - k0 >= 2
    trips = 14 - k0
    head = [i for i in seq[:cuts[k0]] if i.tag != 'blk']
    body = blocks[k0]
    tail = seq[cuts[-1] + 1:]
    print('k2: peeled blocks %d trips %d; model cycles head %d body %d (ideal %d) tail %d' % (
        k0, trips, model_cycles(head), model_cycles(body), 256 * 16, model_cycles(tail)), file=sys.stderr)
    for n, i in enumerate(head):
        if 'NTRIPS' in i.text:
            head[n] = Ins('s_mov_b32 s%d, %d' % (sCNT, trips + k0))
    i = max(n for n, x in enumerate(body) if x.op == 's_cmp_lg_u32')
    assert all(x.kind != 'salu' or x.op == 's_waitcnt' for x in body[i + 1:])

    SG = list(C.stamp_gaps)

    def stamped(L):
        out = []
        for x in L:
            out.append(x)
            if C.stamps and isinstance(x.tag, tuple) and x.tag[1] in SG:
                n = SG.index(x.tag[1])
                out.append(Ins('s_memtime s[%d:%d]' % (82 + 2 * n, 83 + 2 * n)))
        return out
    P.ext(stamped(head))
    if C.xdrop:
        nb, k = [], 0
        for x in body:
            drop = False
            if x.kind == 'lds':
                k += 1
                drop = 'R' in C.xdrop or ('r' in C.xdrop and (k >> 1) & 1)
            if x.op == 'v_add_f32' and 'a' in C.xdrop:
                drop = True
            if x.kind == 'dma' and 'd' in C.xdrop:
                drop = True
            if not drop:
                nb.append(x)
        body = nb
    P.e('L_loop:')
    P.ext(body)
    P.e('s_cbranch_scc1 L_loop')
    P.ext(stamped(tail))
    P.e('s_cmp_lg_u32 s%d, 0\ns_cselect_b32 s%d, 0, s%d' % (sPASS, sBAD, sBAD))
    if not C.xdrop:
        P.e('s_cmp_lg_u32 s%d, 0\ns_cbranch_scc1 L2_fb' % sBAD)
    if C.stamps:
        P.e('s_memtime s[90:91]')
    nmain = len(P.ins)
    P.e('L2_tail:')
    CT.stamps = C.stamps
    P.ext(gen_tail.tail(CT).ins)
    P.e('L2_fin:')
    if C.stamps:
        P.e("""
s_waitcnt vmcnt(0)
s_memrealtime s[64:65]
s_lshl_b32 s47, s2, 3
s_add_u32 s47, s47, s48
s_lshl_b32 s47, s47, 6
s_add_u32 s47, s47, %d
s_waitcnt lgkmcnt(0)
""" % (WS_DBG + 2 * 0x40000))
        for n in range(5):
            P.e('s_sub_u32 s%d, s%d, s80\nv_mov_b32 v%d, s%d' % (82 + 2 * n, 82 + 2 * n, 20 + n, 82 + 2 * n))
        for n in range(6):
            P.e('v_mov_b32 v%d, s%d' % (25 + n, 28 + 2 * n))
        P.e("""
v_mov_b32 v31, s64
v_mov_b32 v32, s100
v_mov_b32 v36, 0
buffer_store_dwordx4 v[20:23], v36, s[20:23], s47 offen
buffer_store_dwordx4 v[24:27], v36, s[20:23], s47 offen offset:16
buffer_store_dwordx4 v[28:31], v36, s[20:23], s47 offen offset:32
buffer_store_dword v32, v36, s[20:23], s47 offen offset:48
""")
    P.e('L2_end:\ns_endpgm')
    F = Prog()
    F.e("""
L2_fb:
v_mov_b32 v12, 0xff800000
v_mov_b32 v13, 0xff800000
s_mov_b32 s49, 1
s_mov_b32 s47, 32
v_accvgpr_read_b32 v6, a252
s_waitcnt vmcnt(0) lgkmcnt(0)
s_barrier
L2_fbl:
""")
    for half in range(2):
        F.e('s_add_u32 m0, s%d, %d\ns_nop 0' % (sMK, half * TILE))
        for j in range(4):
            F.e('buffer_load_dwordx4 v%d, %s, s%d offen offset:%d lds' % (vG, sr(sK, 4), sOK + half * 4 + j, IMMK[j]))
    F.e('v_add_u32 v6, 0x8000, v6\ns_waitcnt vmcnt(0)\ns_barrier')
    for f in range(32):
        kb, ks = f >> 3, f & 7
        F.e('ds_read_b128 %s, v%d offset:%d' % (ar(4 * f, 4), vK[0], (kb >> 1) * TILE + (kb & 1) * 512 + ks * 64))
    F.e('s_waitcnt lgkmcnt(0)\ns_barrier')
    for kb in range(4):
        for rb in range(2):
            for ks in range(8):
                d = vr(sreg(0, kb, rb), 4)
                F.e('%s %s, %s, %s, %s' % (MF, d, ar(4 * (8 * kb + ks), 4), ar(QA + (ks * 2 + rb) * 4, 4), d if ks else '0'))
    F.e('s_nop 7')
    for kb in range(4):
        for rb in range(2):
            r = sreg(0, kb, rb)
            for i in (0, 2):
                F.e('v_max3_f32 v%d, v%d, v%d, v%d' % (12 + rb, 12 + rb, r + i, r + i + 1))
    F.e("""
s_sub_u32 s47, s47, 1
s_cmp_lg_u32 s47, 0
s_cbranch_scc1 L2_fbl
v_accvgpr_write_b32 a250, v12
v_accvgpr_write_b32 a251, v13
v_accvgpr_read_b32 v6, a252
s_branch L2_restart
""")
    lin = P.ins[:nmain + 40]
    li = [n for n, i in enumerate(lin) if i.label == 'L_loop'][0]
    le = [n for n, i in enumerate(lin) if i.text.startswith('s_cbranch_scc1 L_loop')][0]
    lin = lin[:le + 1] + lin[li:le + 1] + lin[le + 1:]
    for p in check_hazards(lin) + check_hazards(F.ins + F.ins):
        print('HAZARD', p, file=sys.stderr)
    P.ext(F.ins)
    P.e('L2_codeend:')
    code = khead(kname) + P.text().replace('L_loop', 'L2_loop')
    return code, kernel_desc(kname, 512, 256), '; @launch kernel=%s grid=(256,1,1) block=(256,1,1) lds=%d' % (kname, LDS_BYTES)


def assemble(parts):
    hdr = '\n'.join(p[2] for p in parts) + '\n.amdgcn_target "amdgcn-amd-amdhsa--gfx950"\n'
    return hdr + ''.join(p[0] for p in parts) + ''.join(p[1] for p in parts)


if __name__ == '__main__':
    C = Cfg()
    out = sys.argv[1]
    for a in sys.argv[2:]:
        k, v = a.split('=', 1)
        setattr(C, k, eval(v))
    open(out, 'w').write(assemble([gen(C)]))
```

```python
import sys
from asmlib import *
from sched2 import *
from common import *
from gen_k1 import fix_hazards, f32

MF = 'v_mfma_f32_16x16x32_bf16'
WS = 's[20:23]'
vX, vRP, vPOLL, vONE = 8, 10, 15, 11
sT, sT2 = [40, 41, 42, 43], [44, 45, 46, 47]
SPIN = 1 << 17
ST0 = 28


class Cfg:
    ld = ' sc1'
    st = ' sc1'
    sleep = 2
    stamps = False
    LEAD4 = 20
    PRE4 = 4
    HPRE4 = 2
    HSTEP4 = 2
    NS = 9
    HPRE5 = 5
    HSTEP5 = 1.5
    verbose = False


def stamp(P, C, k):
    if C.stamps:
        P.e('s_memrealtime s[%d:%d]' % (ST0 + 2 * k, ST0 + 2 * k + 1))


def rp_addr(P, d, t):
    return ['v_bfe_u32 v%d, v%d, 5, 3' % (d, vX), 'v_mul_u32_u24 v%d, 1792, v%d' % (d, d),
            'v_lshrrev_b32 v%d, 8, v%d' % (t, vX), 'v_lshl_add_u32 v%d, v%d, 5, v%d' % (d, t, d),
            'v_and_b32 v%d, 16, v%d' % (t, vX), 'v_add_u32 v%d, v%d, v%d' % (d, d, t)]


def flag(P, C, soff):
    P.e('''
s_mov_b64 exec, 1
buffer_store_dword v%d, off, %s, s%d%s
s_mov_b64 exec, -1
''' % (vONE, WS, soff, C.st))


def tree(P, reg, lo, hi, lab, uid):
    if lo == hi:
        P.e('s_branch %s' % lab(lo))
        return
    if hi == lo + 1:
        P.e('s_cmp_eq_u32 s%d, %d\ns_cbranch_scc1 %s\ns_branch %s' % (reg, lo, lab(lo), lab(hi)))
        return
    mid = (lo + hi + 1) // 2
    l = '%s_%d_%d' % (uid, mid, hi)
    P.e('s_cmp_ge_u32 s%d, %d\ns_cbranch_scc1 %s' % (reg, mid, l))
    tree(P, reg, lo, mid - 1, lab, uid)
    P.e(l + ':')
    tree(P, reg, mid, hi, lab, uid)


HOLE = [128 + 8 * k + 4 for k in range(16)]
XQ, MQ = HOLE[0:2], HOLE[2:14]
QUAD = list(range(16, 80, 4)) + [128 + 8 * k for k in range(16)]
AC3 = 80
vB, vXA, vXB, vMA, vMB, vTMP = 108, 109, 110, 111, 112, 113
sRP = 75


def s3_early():
    A = ['s_mov_b32 s76, s3', 's_mov_b32 s77, s52', 's_mov_b32 s78, %d' % ACT,
         's_lshl_b32 s%d, s2, 2' % sRP, 's_add_u32 s%d, s%d, s48' % (sRP, sRP), 's_mul_i32 s%d, s%d, 1792' % (sRP, sRP),
         's_mov_b32 s74, %d' % WS_MOD,
         'v_add_u32 v%d, 0x100, v%d' % (vTMP, vX), 'v_lshlrev_b32 v%d, 21, v%d' % (vTMP, vTMP),
         'v_and_b32 v%d, 0x80000000, v%d' % (vTMP, vTMP),
         'v_or_b32 v%d, v%d, v%d' % (vB, vTMP, vX),
         'v_bfe_u32 v%d, v%d, 4, 1' % (vXA, vX), 'v_mul_u32_u24 v%d, 896, v%d' % (vXA, vXA),
         'v_lshrrev_b32 v%d, 7, v%d' % (vMA, vX), 'v_lshl_add_u32 v%d, v%d, 6, v%d' % (vXA, vMA, vXA),
         'v_bfe_u32 v%d, v%d, 5, 2' % (vMA, vX), 'v_lshl_add_u32 v%d, v%d, 3, v%d' % (vXA, vMA, vXA),
         'v_or_b32 v%d, v%d, v%d' % (vXB, vTMP, vXA),
         'v_and_b32 v%d, 0x3e0, v%d' % (vMA, vX),
         'v_or_b32 v%d, v%d, v%d' % (vMB, vTMP, vMA)]
    L = []
    for part in range(2):
        for j in range(2):
            L.append('buffer_load_dwordx2 %s, v%d, s[76:79], s%d offen offset:%d' % (vr(XQ[part] + 2 * j, 2), (vXA, vXB)[part], sRP, 512 * part + 32 * j))
    for vec in range(3):
        for part in range(2):
            for j in range(2):
                off = vec * 1792 + part * 1024 + 16 * j
                L.append(('buffer_load_dwordx4 %s, v%d, %s, s%d offen offset:%d' % (vr(MQ[vec * 4 + part * 2 + j], 4), (vMA, vMB)[part], WS, 74, off))
                         if off < 4096 else
                         ('buffer_load_dwordx4 %s, v%d, %s, s%d offen offset:%d' % (vr(MQ[vec * 4 + part * 2 + j], 4), (vMA, vMB)[part], WS, 73, off - 4096)))
    A.append('s_mov_b32 s73, %d' % (WS_MOD + 4096))
    return A, L


def s3(P, C, pre4, nxt):
    sPEND, sNEW, sN, sDONE, sSPIN, sSL, sH, sO, sC0, sC1 = 49, 50, 51, 52, 53, 54, 56, 57, 58, 59
    A = Prog()
    A.e('''
s_and_b32 s40, s2, 7
s_lshl_b32 s40, s40, 3
s_and_b32 s41, s2, 8
s_lshr_b32 s41, s41, 1
s_add_u32 s40, s40, s41
s_lshr_b32 s41, s2, 4
s_lshl_b32 s41, s41, 2
s_add_u32 s41, s41, s48
s_lshl_b32 s41, s41, 7
s_add_u32 s40, s40, s41
s_add_u32 s19, s40, {fl2}
s_lshr_b32 s24, s2, 2
s_lshl_b32 s24, s24, 7
s_add_u32 s24, s24, {fl2}
s_and_b32 s25, s2, 3
s_lshl_b32 s25, s25, 2
s_add_u32 s25, s25, s48
s_lshl_b32 s25, s25, 2
s_add_u32 s25, s25, s24
s_add_u32 s25, s25, 0x4000
s_add_u32 s{sl}, s{rp}, {slab}
s_add_u32 s26, s{rp}, {x1}
s_add_u32 s27, s{rp}, {h2}
s_mov_b32 s{pend}, 0xffff
s_mov_b32 s{spin}, 0
s_mov_b32 s{c0}, 0x3f80
s_mov_b32 s{c1}, 0x3f800000
s_cmp_ge_u32 s2, 224
s_cselect_b32 s{done}, 1, 0
v_mov_b32 v{one}, 1
v_lshrrev_b32 v{poll}, 2, v{x}
v_and_b32 v{poll}, 0x7c, v{poll}
'''.format(fl2=WS_FLG, sl=sSL, rp=sRP, slab=WS_SLAB, x1=WS_X1, h2=WS_H2, pend=sPEND, spin=sSPIN, c0=sC0, c1=sC1, done=sDONE,
           one=vONE, poll=vPOLL, x=vX))
    for i in range(16):
        A.e('v_mov_b32 v%d, 0' % (AC3 + i))
    nxt(A)
    A.e('s_waitcnt vmcnt(0)')
    flag(A, C, 19)
    stamp(A, C, 0)
    A.e('s_barrier')
    A.e('''
L3_poll:
buffer_load_dword v0, v{poll}, {ws}, s24 offen{ld}
s_waitcnt vmcnt(0)
v_cmp_ne_u32 vcc, 0, v0
s_nop 0
s_and_b32 s{new}, vcc_lo, s{pend}
s_cbranch_scc0 L3_idle
L3_go:
s_andn2_b32 s{pend}, s{pend}, s{new}
s_bcnt1_i32_b32 s{n}, s{new}
'''.format(poll=vPOLL, ws=WS, ld=C.ld, new=sNEW, pend=sPEND, n=sN))
    tree(A, sN, 1, 16, lambda k: 'L3_i%d' % (16 - k), 'L3_ti')
    for s in range(16):
        A.e('''
L3_i{s}:
s_ff1_i32_b32 s{h}, s{new}
s_bitset0_b32 s{new}, s{h}
s_mul_i32 s{o}, s{h}, {act}
s_add_u32 s{o}, s{o}, s{sl}
buffer_load_dwordx4 {qa}, v{x}, {ws}, s{o} offen{ld}
buffer_load_dwordx4 {qb}, v{b}, {ws}, s{o} offen offset:1024{ld}
'''.format(s=s, h=sH, new=sNEW, o=sO, act=ACT, sl=sSL, qa=vr(QUAD[2 * s], 4), qb=vr(QUAD[2 * s + 1], 4), x=vX, b=vB, ws=WS, ld=C.ld))
    tree(A, sN, 1, 16, lambda k: 'L3_a%d' % (16 - k), 'L3_ta')
    for s in range(16):
        A.e('L3_a%d:\ns_waitcnt vmcnt(%d)' % (s, 2 * (15 - s)))
        for part in range(2):
            for d in range(4):
                for e in range(2):
                    a = AC3 + part * 8 + 2 * d + e
                    A.e('v_dot2_f32_bf16 v%d, v%d, s%d, v%d' % (a, QUAD[2 * s + part] + d, (sC0, sC1)[e], a))
    A.e('s_cmp_lg_u32 s%d, 0\ns_cbranch_scc1 L3_poll\ns_branch L3_fin' % sPEND)
    A.e('L3_idle:')
    if pre4:
        A.e('s_cmp_lg_u32 s%d, 0\ns_cbranch_scc1 L3_idle2\ns_mov_b32 s%d, 1' % (sDONE, sDONE))
        for t in pre4:
            A.e(t)
        A.e('L3_idle2:')
    A.e('''
s_sleep {sl}
s_add_u32 s{spin}, s{spin}, 1
s_cmp_lt_u32 s{spin}, {lim}
s_cbranch_scc1 L3_poll
s_mov_b32 s{new}, s{pend}
s_branch L3_go
L3_fin:
'''.format(sl=C.sleep, spin=sSPIN, lim=SPIN, new=sNEW, pend=sPEND))
    stamp(A, C, 1)
    T = 16
    mod = lambda vec, i: MQ[vec * 4 + (i >> 2)] + (i & 3)
    for part in range(2):
        for d in range(4):
            A.e('v_lshlrev_b32 v%d, 16, v%d\nv_and_b32 v%d, 0xffff0000, v%d' % (T + 8 * part + 2 * d, XQ[part] + d, T + 8 * part + 2 * d + 1, XQ[part] + d))
    for i in range(16):
        A.e('v_fma_f32 v%d, v%d, v%d, v%d' % (AC3 + i, AC3 + i, mod(0, i), T + i))
    S = 32
    for i in range(8):
        A.e('v_add_f32 v%d, v%d, v%d' % (S + i, AC3 + i, AC3 + 8 + i))
    for w in (4, 2, 1):
        for i in range(w):
            A.e('v_add_f32 v%d, v%d, v%d' % (S + i, S + i, S + w + i))

    def xl(r, t, fill=()):
        fill = list(fill)

        def f(n):
            for _ in range(n):
                if fill:
                    A.e(fill.pop(0))
        f(2)
        for m in ('quad_perm:[2,3,0,1]', 'row_ror:4', 'row_ror:8'):
            A.e('v_add_f32_dpp v{r}, v{r}, v{r} {m} row_mask:0xf bank_mask:0xf'.format(r=r, m=m))
            f(2)
        for sw in ('16', '32'):
            A.e('v_mov_b32 v%d, v%d' % (t, r))
            f(2)
            A.e('v_permlane{s}_swap_b32 v{r}, v{t}\nv_add_f32 v{r}, v{r}, v{t}'.format(r=r, t=t, s=sw))
        f(99)
    O = 40
    xl(S, S + 1, ['v_cvt_pk_bf16_f32 v%d, v%d, v%d' % (O + d, AC3 + 2 * d, AC3 + 2 * d + 1) for d in range(8)] +
       ['buffer_store_dwordx4 %s, v%d, %s, s26 offen%s' % (vr(O, 4), vX, WS, C.st),
        'buffer_store_dwordx4 %s, v%d, %s, s26 offen offset:1024%s' % (vr(O + 4, 4), vB, WS, C.st)])
    A.e('v_mul_f32 v%d, %s, v%d' % (S, f32(1 / 448.), S))
    for i in range(16):
        A.e('v_sub_f32 v%d, v%d, v%d' % (AC3 + i, AC3 + i, S))
    A.e('v_mul_f32 v%d, v%d, v%d\nv_mul_f32 v%d, v%d, v%d' % (S, AC3, AC3, S + 1, AC3 + 1, AC3 + 1))
    for i in range(2, 16):
        if i == 8:
            A.e('s_mov_b32 exec_hi, 0xffff')
        A.e('v_fmac_f32 v%d, v%d, v%d' % (S + i % 2, AC3 + i, AC3 + i))
    A.e('s_mov_b32 exec_hi, -1\nv_add_f32 v%d, v%d, v%d' % (S, S, S + 1))
    xl(S, S + 1, ['v_mul_f32 v%d, v%d, v%d' % (AC3 + i, AC3 + i, mod(2, i)) for i in range(16)])
    A.e('''
v_mov_b32 v{t}, {eps}
v_fmac_f32 v{t}, {inv}, v{s}
v_rsq_f32 v{t}, v{t}
'''.format(t=S + 1, s=S, eps=f32(1e-5), inv=f32(1 / 448.)))
    for i in range(16):
        A.e('v_fma_f32 v%d, v%d, v%d, v%d' % (AC3 + i, AC3 + i, S + 1, mod(1, i)))
    O = 48
    for d in range(8):
        A.e('v_cvt_pk_bf16_f32 v%d, v%d, v%d' % (O + d, AC3 + 2 * d, AC3 + 2 * d + 1))
    A.e('buffer_store_dwordx4 %s, v%d, %s, s27 offen%s' % (vr(O, 4), vX, WS, C.st))
    A.e('buffer_store_dwordx4 %s, v%d, %s, s27 offen offset:1024%s' % (vr(O + 4, 4), vB, WS, C.st))
    if pre4:
        A.e('s_waitcnt vmcnt(0)')
        flag(A, C, 25)
        stamp(A, C, 2)
        A.e('s_cmp_ge_u32 s2, 224\ns_cbranch_scc1 L2_fin')
        A.e('s_cmp_lg_u32 s%d, 0\ns_cbranch_scc1 L3_end' % sDONE)
        for t in pre4:
            A.e(t)
        A.e('L3_end:')
    P.ext(fix_hazards(A.ins))


def poll(P, C, name, soff, need, between=None):
    P.e('s_mov_b32 s53, 0')
    P.e('buffer_load_dword v0, v%d, %s, s%d offen%s\ns_waitcnt vmcnt(0)' % (vPOLL, WS, soff, C.ld))
    if between:
        between()
    P.e('''
s_branch {n}_chk
{n}_poll:
s_sleep {sl}
s_add_u32 s53, s53, 1
s_cmp_ge_u32 s53, {lim}
s_cbranch_scc1 {n}_go
buffer_load_dword v0, v{p}, {ws}, s{o} offen{ld}
s_waitcnt vmcnt(0)
{n}_chk:
v_cmp_eq_u32 vcc, 0, v0
s_nop 0
s_and_b32 s50, vcc_lo, {need}
s_cbranch_scc1 {n}_poll
{n}_go:
'''.format(n=name, sl=C.sleep, lim=SPIN, p=vPOLL, ws=WS, o=soff, ld=C.ld, need=need))


class Temps:
    def __init__(self):
        self.n = [0, 0]

    def __call__(self, k):
        self.n[k] += 1
        return (sT, sT2)[k][self.n[k] % 4]


TILE4, STAGE4 = 16640, 33280
IMM4 = {(0, 0): 0, (0, 1): 1024, (1, 0): 2080, (1, 1): 3104}
sM4, sH4, sO4, sP4, sF4 = 12, 13, 14, 17, 18
vR4, vG4 = [1, 2], 3


def setup4(P):
    P.e('''
s_and_b32 s40, s2, 7
s_lshr_b32 s41, s2, 3
s_mul_i32 s42, s41, 9363
s_lshr_b32 s42, s42, 16
s_mul_i32 s43, s42, 7
s_sub_u32 s43, s41, s43
s_lshr_b32 s44, s40, 1
s_lshl_b32 s44, s44, 2
s_add_u32 s42, s42, s44
s_and_b32 s44, s40, 1
s_mul_i32 s44, s44, 7
s_add_u32 s43, s43, s44
s_lshl_b32 s44, s42, 2
s_add_u32 s44, s44, s48
s_mul_i32 s13, s44, 28672
s_add_u32 s13, s13, {h2}
s_add_u32 s16, s13, 14336
s_mul_i32 s14, s44, 114688
s_lshl_b32 s45, s43, 12
s_add_u32 s14, s14, s45
s_add_u32 s14, s14, {hh}
s_add_u32 s15, s14, 57344
s_lshl_b32 s17, s44, 7
s_add_u32 s17, s17, {fl3}
s_lshl_b32 s18, s44, 6
s_lshl_b32 s45, s43, 2
s_add_u32 s18, s18, s45
s_add_u32 s18, s18, {fl4}
s_mul_i32 s12, s48, 4160
s_lshl_b32 s46, s43, 8
s_sub_u32 s6, {sz}, s46
s_mov_b32 s10, s6
s_mov_b32 s7, 0x20000
s_mov_b32 s11, 0x20000
s_add_u32 s4, s60, s46
s_addc_u32 s5, s61, 0
s_sub_u32 s4, s4, 4096
s_subb_u32 s5, s5, 0
s_add_u32 s8, s64, s46
s_addc_u32 s9, s65, 0
s_sub_u32 s8, s8, 4096
s_subb_u32 s9, s9, 0
v_lshrrev_b32 v4, 8, v8
v_lshl_add_u32 v5, v4, 3, s48
v_mul_u32_u24 v3, 3584, v5
v_and_b32 v5, 0xf0, v8
v_add_u32 v3, v3, v5
v_bfe_u32 v5, v8, 6, 2
v_mul_u32_u24 v1, 4160, v5
v_and_b32 v5, 1, v4
v_mul_u32_u24 v5, 2080, v5
v_add_u32 v1, v1, v5
v_lshrrev_b32 v5, 1, v4
v_lshl_add_u32 v1, v5, 8, v1
v_bfe_u32 v5, v8, 4, 2
v_lshl_add_u32 v1, v5, 3, v1
v_add_u32 v2, {st2}, v1
'''.format(h2=WS_H2, hh=WS_HH, fl3=WS_FLG + 0x4000, fl4=WS_FLG + 0x8000, sz=448 * 3584 + 4096, st2=2 * STAGE4))


def dma4(j, st):
    L = []
    for kt in range(2):
        for n, (b, mat) in enumerate(sorted(IMM4)):
            sc = []
            if n == 0:
                sc.append('s_add_u32 m0, s%d, %d' % (sM4, (j % 4) * STAGE4 + kt * TILE4))
            t = st(0)
            sc.append('s_mov_b32 s%d, %d' % (t, (64 * j + 32 * kt + 4 * b) * 3584 - IMM4[(b, mat)] + 4096))
            L.append((sc, 'buffer_load_dwordx4 v%d, %s, s%d offen offset:%d lds' % (vG4, sr((4, 8)[mat], 4), t, IMM4[(b, mat)])))
    return L


def preload4(C):
    st = Temps()
    return [t for j in range(C.PRE4) for sc, d in dma4(j, st) for t in sc + [d]]


def s4(P, C, fused, mid=None):
    HB, ACC = 16, 128
    st = Temps()

    def hload(j):
        return ['buffer_load_dwordx4 %s, v%d, %s, s%d offen offset:%d%s' % (vr(HB + (ks * 2 + rb) * 4, 4), vRP, WS, (13, 16)[rb], ks * 128, C.ld)
                for ks in (2 * j, 2 * j + 1) for rb in range(2)]
    acc = lambda mat, cb, rb: ACC + mat * 64 + (cb >> 1) * 16 + rb * 8 + (cb & 1) * 4
    ops = []

    def op(text, tag=None, **kw):
        ops.append(Op(Ins(text, tag), **kw))
    bar = lambda j: 64 * j + 64 - C.LEAD4
    tg = 1
    for j in range(C.HPRE4, 7):
        for d in hload(j):
            op(d, tgt=tg, lo=0, early=False)
            tg += C.HSTEP4
    for j in range(C.PRE4, 7):
        lo = 0 if j < 4 else bar(j - 3) + 1
        tg = max(tg, lo + 1)
        for k, (sc, d) in enumerate(dma4(j, st)):
            for s in sc:
                op(s, tgt=tg - 2, lo=max(0, tg - 6))
            op(d, tag='S%d' % j, tgt=tg, lo=lo, hi=bar(j - 1) - 10, early=False)
            tg += 2
    for j in range(7):
        b0 = 64 * j
        wlo = bar(j - 1) + 1 if j else -70
        order = [(cb, mat, rb, kt) for cb in range(8) for mat in range(2) for rb in range(2) for kt in range(2)]
        f = 0
        for cb in range(8):
            for mat in range(2):
                for kt in range(2):
                    for u in range(2):
                        off = (j & 1) * STAGE4 + kt * TILE4 + mat * 1024 + u * 512 + cb * 32
                        kw = dict(hi=-1) if j == 0 else {}
                        op('ds_read_b64_tr_b16 %s, v%d offset:%d' % (ar(4 * f + 2 * u, 2), vR4[(j >> 1) & 1], off),
                           tgt=wlo + 2 * f + u, lo=wlo, early=False, **kw)
                    f += 1
        for m, (cb, mat, rb, kt) in enumerate(order):
            d = vr(acc(mat, cb, rb), 4)
            op('%s %s, %s, %s, %s' % (MF, d, ar(4 * (cb * 4 + mat * 2 + kt), 4), vr(HB + ((2 * j + kt) * 2 + rb) * 4, 4),
                                      '0' if j == 0 and kt == 0 else d), gap=b0 + m)
        if j < 6:
            if j + 1 >= C.PRE4:
                op('s_waitcnt vmcnt(@S%d)' % (j + 1), gap=bar(j))
            if j >= 1 or C.PRE4 < 2:
                op('s_barrier', gap=bar(j) + 1)
    for e in range(4):
        for rb in range(2):
            r = acc(0, 2 * e, rb)
            for i in range(8):
                op('v_mul_f32 v%d, v%d, v%d' % (r + i, r + i, r + 64 + i), tgt=0)
            for i in range(4):
                op('v_cvt_pk_bf16_f32 v%d, v%d, v%d' % (r + i, r + 2 * i, r + 2 * i + 1), tgt=0)
            op('buffer_store_dwordx4 %s, v%d, %s, s%d offen offset:%d%s' % (vr(r, 4), vX, WS, sO4 + rb, e * 1024, C.st), tgt=0)
    logical = list(ops)
    pre, gaps, post = schedule(ops, 448, 's4')
    verify(logical, pre + flatten(gaps) + post)
    if C.verbose:
        print(' '.join(''.join(o.cls for o in sc + vec) or '.' for m, sc, vec in gaps), file=sys.stderr)
    Q = Prog()

    def between():
        Q.e('s_barrier')
        Q.ext([o.ins for o in pre])
    if fused:
        if mid:
            mid(Q)
        poll(Q, C, 'L4', sP4, '0xffff', between)
        for j in range(C.HPRE4):
            for d in hload(j):
                Q.e(d)
    else:
        for j in range(C.HPRE4):
            for d in hload(j):
                Q.e(d)
        for t in preload4(C):
            Q.e(t)
        Q.e('s_waitcnt vmcnt(0)')
        between()
    R = Prog()
    R.ext(Q.ins[-4 * C.HPRE4:] if fused else [])
    if fused:
        del Q.ins[-4 * C.HPRE4:]
    R.e('s_waitcnt lgkmcnt(0)')
    R.e('; ST3')
    R.ext([o.ins for o in flatten(gaps)])
    R.ext([o.ins for o in post])
    seq, _, _ = add_waits(R.ins)
    print('s4: model cycles %d' % model_cycles(seq), file=sys.stderr)
    P.ext(fix_hazards(Q.ins + seq))


vA5, vG5, vPO, vOUT, vLW, vLR = 4, 9, 12, 13, 14, 0
sM5, sH5, sA5, sX5, sO5, sG5, sP5, sN5 = 92, 93, 94, 95, 96, 97, 98, 99


def setup5(P, C):
    WB = C.NS * 4096
    P.e('''
s_load_dwordx2 s[24:25], s[0:1], 88
s_and_b32 s40, s2, 7
s_lshr_b32 s41, s2, 3
s_mul_i32 s42, s41, 9363
s_lshr_b32 s42, s42, 16
s_mul_i32 s43, s42, 7
s_sub_u32 s43, s41, s43
s_lshl_b32 s44, s40, 2
s_add_u32 s42, s42, s44
s_mul_i32 s93, s42, {rb4}
s_mul_i32 s44, s48, 14336
s_add_u32 s93, s93, s44
s_add_u32 s93, s93, {hh}
s_mul_i32 s94, s48, {wdw}
s_lshl_b32 s45, s43, 7
s_add_u32 s94, s94, s45
s_mul_i32 s92, s48, {wb}
s_lshl_b32 s46, s42, 2
s_add_u32 s46, s46, s48
s_mul_i32 s46, s46, 14336
s_add_u32 s96, s46, s45
s_lshl_b32 s47, s43, 8
s_add_u32 s95, s46, s47
s_add_u32 s95, s95, {x1}
s_add_u32 s97, s47, {gb}
s_lshl_b32 s98, s42, 7
s_add_u32 s98, s98, {fl4}
s_mul_i32 s99, s48, 7
s_lshr_b32 s99, s99, 1
s_lshl_b32 s99, 0xf000f, s99
v_lshrrev_b32 v12, 8, v8
v_lshrrev_b32 v13, 7, v8
v_mul_u32_u24 v9, 896, v13
v_bfe_u32 v13, v8, 4, 3
v_lshlrev_b32 v14, 1, v12
v_xor_b32 v13, v13, v14
v_lshl_add_u32 v9, v13, 4, v9
v_lshrrev_b32 v13, 6, v8
v_lshlrev_b32 v4, 7, v13
v_bfe_u32 v13, v13, 1, 2
v_lshl_add_u32 v4, v13, 5, v4
v_bfe_u32 v13, v8, 4, 2
v_lshl_add_u32 v4, v13, 3, v4
v_add_u32 v4, s92, v4
v_xor_b32 v5, 32, v4
v_xor_b32 v6, 64, v4
v_xor_b32 v7, 0x60, v4
v_bfe_u32 v13, v8, 4, 4
v_mul_u32_u24 v13, 896, v13
v_and_b32 v14, 1, v12
v_lshl_add_u32 v13, v14, 5, v13
v_lshrrev_b32 v14, 1, v12
v_lshl_add_u32 v13, v14, 4, v13
v_lshlrev_b32 v12, 5, v12
v_add_u32 v14, s92, v8
s_waitcnt lgkmcnt(0)
s_mov_b32 s76, s24
s_mov_b32 s77, s25
s_mov_b32 s78, {act}
s_mov_b32 s79, 0x20000
'''.format(rb4=4 * 57344, hh=WS_HH, wdw=448 * 896, wb=WB, x1=WS_X1, gb=WS_MOD + 3 * 1792, fl4=WS_FLG + 0x8000, act=ACT))


def s5(P, C, fused):
    NS = C.NS
    WB = NS * 4096
    ACC, RING, NR = 16, 80, 12
    XR, GB = 128, 136
    st = Temps()

    def dma(k):
        L = []
        for j in range(4):
            sc = []
            if j == 0:
                sc.append('s_add_u32 m0, s%d, %d' % (sM5, (k % NS) * 4096))
            t = st(0)
            sc.append('s_add_u32 s%d, s%d, %d' % (t, sA5, (32 * k + 8 * j) * 896 - 1024 * j))
            L.append((sc, 'buffer_load_dwordx4 v%d, s[68:71], s%d offen offset:%d lds' % (vG5, t, 1024 * j), 'A%d' % k))
        return L

    def hl(k):
        L = []
        for rb in range(4):
            t = st(1)
            L.append((['s_add_u32 s%d, s%d, %d' % (t, sH5, rb * 57344 + (k & ~3) * 1024)],
                      'buffer_load_dwordx4 %s, v%d, %s, s%d offen offset:%d%s' % (ar((k * 4 + rb) * 4, 4), vX, WS, t, (k & 3) * 1024, C.ld), None))
        return L
    ops = []

    def op(text, tag=None, **kw):
        ops.append(Op(Ins(text, tag), **kw))
    pro = [x for k in range(NS) for x in dma(k)]
    hpre = [x for k in range(C.HPRE5) for x in hl(k)]
    tg = 1
    for k in range(C.HPRE5, 14):
        for sc, d, tag in hl(k):
            for s in sc:
                op(s, tgt=tg - 2, lo=max(0, tg - 6))
            op(d, tgt=tg, lo=0, early=False)
            tg += C.HSTEP5
    for kk in range(NS, 14):
        lo = 16 * (kk - NS) + 16
        tg = lo + 1
        for sc, d, tag in dma(kk):
            for s in sc:
                op(s, tgt=tg - 2, lo=max(0, tg - 6))
            op(d, tag=tag, tgt=tg, lo=lo, early=False)
            tg += 1.5
    tg += 4
    for e in range(2):
        op('buffer_load_dwordx4 %s, v%d, %s, s%d offen offset:%d%s' % (vr(XR + 4 * e, 4), vRP, WS, sX5, 128 * e, C.ld), tgt=tg, lo=0, early=False)
        for i in range(2):
            op('buffer_load_dwordx4 %s, v%d, %s, s%d offen offset:%d' % (vr(GB + 8 * e + 4 * i, 4), vPO, WS, sG5, 128 * e + 16 * i), tgt=tg + 2, lo=0, early=False)
        tg += 5
    op('s_lshl_b32 s50, s48, 12', tgt=150, lo=100)
    op('v_add_u32 v%d, s50, v%d' % (vLR, vX), tgt=160, lo=100)
    acc = lambda rb, cb: ACC + rb * 16 + cb * 4
    f = 0
    for k in range(14):
        wg = 16 * k - 14
        if k >= NS:
            op('s_waitcnt vmcnt(@A%d)' % k, gap=wg)
        fr = []
        for cb in range(4):
            r = RING + 4 * (f % NR)
            f += 1
            fr.append(r)
            for u in range(2):
                kw = dict(hi=-1, lo=-50, tgt=-20) if k < 3 else dict(tgt=wg + cb - (0 if k >= NS else 16), lo=wg if k >= NS else 0)
                op('ds_read_b64_tr_b16 %s, v%d offset:%d' % (vr(r + 2 * u, 2), vA5 + cb, (k % NS) * 4096 + u * 2048), **kw)
        m = 0
        for cb in range(4):
            for rb in range(4):
                d = vr(acc(rb, cb), 4)
                op('%s %s, %s, %s, %s' % (MF, d, vr(fr[cb], 4), ar((k * 4 + rb) * 4, 4), d if k else '0'), gap=16 * k + m)
                m += 1
    logical = list(ops)
    pre, gaps, post = schedule(ops, 224, 's5')
    verify(logical, pre + flatten(gaps) + post)
    if C.verbose:
        print(' '.join(''.join(o.cls for o in sc + vec) or '.' for m, sc, vec in gaps), file=sys.stderr)
    Q = Prog()
    if fused:
        Q.e('s_waitcnt vmcnt(0)')
        flag(Q, C, sF4)
        stamp(Q, C, 4)
        Q.e('s_barrier')
    for sc, d, tag in pro:
        for s in sc:
            Q.e(s)
        Q.e(d)

    def between():
        Q.ext([o.ins for o in pre])
    if fused:
        poll(Q, C, 'L5', sP5, 's%d' % sN5, between)
    else:
        Q.e('s_waitcnt vmcnt(0)')
        between()
    R = Prog()
    for sc, d, tag in hpre:
        for s in sc:
            R.e(s)
        R.e(d)
    R.e('s_waitcnt lgkmcnt(0)')
    R.e('; ST5')
    R.ext([o.ins for o in flatten(gaps)])
    R.ext([o.ins for o in post])
    for rb in range(4):
        for cb in range(4):
            R.e('ds_write_b128 v%d, %s offset:%d' % (vLW, vr(acc(rb, cb), 4), rb * 4096 + cb * 1024))
    R.e('s_waitcnt lgkmcnt(0)\ns_barrier')
    for w in range(4):
        if w == 2:
            R.e('v_add_u32 v%d, %d, v%d' % (vLR, 2 * WB, vLR))
        for cb in range(4):
            R.e('ds_read_b128 %s, v%d offset:%d' % (vr(acc(w, cb), 4), vLR, (w & 1) * WB + cb * 1024))
    for w in range(1, 4):
        for i in range(16):
            R.e('v_add_f32 v%d, v%d, v%d' % (ACC + i, ACC + i, ACC + 16 * w + i))
    T = ACC + 16
    for d in range(8):
        R.e('v_lshlrev_b32 v%d, 16, v%d\nv_and_b32 v%d, 0xffff0000, v%d' % (T + 2 * d, XR + d, T + 2 * d + 1, XR + d))
    for i in range(16):
        R.e('v_fma_f32 v%d, v%d, v%d, v%d' % (ACC + i, ACC + i, GB + i, T + i))
    for d in range(8):
        R.e('v_cvt_pk_bf16_f32 v%d, v%d, v%d' % (T + d, ACC + 2 * d, ACC + 2 * d + 1))
    for e in range(2):
        for i in range(2):
            R.e('v_permlane16_swap_b32 v%d, v%d' % (T + 4 * e + i, T + 4 * e + 2 + i))
    for e in range(2):
        R.e('buffer_store_dwordx4 %s, v%d, s[76:79], s%d offen offset:%d' % (vr(T + 4 * e, 4), vOUT, sO5, 64 * e))
    seq, _, _ = add_waits(R.ins)
    print('s5: model cycles %d' % model_cycles(seq), file=sys.stderr)
    P.ext(fix_hazards(Q.ins + seq))


def put_stamps(P, C):
    out = []
    for x in P.ins:
        if x.text.startswith('; ST'):
            if C.stamps:
                k = int(x.text[4:])
                out.append(Ins('s_memrealtime s[%d:%d]' % (ST0 + 2 * k, ST0 + 2 * k + 1)))
            continue
        out.append(x)
    P.ins = out


def tail(C):
    P = Prog()
    s3(P, C, preload4(C), setup4)
    s4(P, C, True, mid=lambda Q: setup5(Q, C))
    s5(P, C, True)
    put_stamps(P, C)
    return P
```

```python
import sys
import gen_k1, gen_k2, gen_tail
from common import *

def make(opts):
    C2, CT = gen_k2.Cfg(), gen_tail.Cfg()
    k1 = {}
    if 'ST' in opts:
        opts = [o for o in opts if o != 'ST'] + ['k%d.stamps=True' % i for i in range(1, 3)]
    for a in opts:
        k, v = a.split('=', 1)
        who, k = k.split('.')
        if who == 'k1':
            k1[k] = eval(v)
        else:
            assert hasattr({'k2': C2, 't': CT}[who], k), k
            setattr({'k2': C2, 't': CT}[who], k, eval(v))
    parts = [gen_k1.gen(**k1), gen_k2.gen(C2, CT)]
    ref = open('cdna_kernels/%s.s.ref' % NAME).read().split('\n')
    hdr = [l for l in ref if l.startswith(';') and '@launch' not in l and 'Override' not in l and 'grid=ceil' not in l]
    return '\n'.join(hdr) + '\n' + gen_k2.assemble(parts)

if __name__ == '__main__':
    open(sys.argv[1], 'w').write(make(sys.argv[2:]))
```

```python
import sys
from asmlib import *
from sched2 import *
from common import *
import gen_tail

TILE, STAGE, SETB = 17024, 34048, 68096
PAR = 136192
FLAG = PAR + 16384
LDS_BYTES = FLAG + 64
MF = 'v_mfma_f32_16x16x32_bf16'


class Cfg:
    LEAD = 24
    RW = 7
    DSTEP = 4.0
    DSTEP2 = 3.0
    BAR0 = 30
    XT = 50
    PRE_X = 2
    PRE_D1 = False
    NMID = 9
    stamps = False
    store_flags = ' sc1'
    warm = True
    verbose = False
    pf = 7
    PFP = 2
    stamp_gaps = [0, 512, 896, 1409]
    xdrop = ''
    E3 = 110


vV, vK = [1, 2], [3, 4]
vGq, vG, vP, vX = 5, 6, 7, 8
vT = [10, 11, 12, 13]
vW = 9
vFL = [250, 251]
vB0 = 15
vGo = 0
SB = [16, 48]
NEGM = 80
vL = [88, 89, 90, 91]
vM = [92, 93, 94, 95]
vO = 96
vF = 104
PR = 112
ACC = 128
QA = 128
sK, sV, sWQ, sWO, sWS = 4, 8, 12, 16, 20
sOK, sOV = 24, 32
sMK, sMV, sMO = 40, 41, 42
sT = [43, 44, 45, 46]
sT2 = [96, 97, 98, 99]
sWM = 76
sCNT, sW, sPASS, sXH, sSL, sLI, sBAD = 47, 48, 49, 50, 51, 52, 53
sWK, sWV, sWW, sWO2, sWQ2 = 54, 55, 56, 57, 58
IMMK = [0, 1024, 2064, 3088]
IMMV = [0, 1024, 2176, 3200]
ROWJ = [0, 8, 4, 12]


def hreg(ks, rb):
    return 16 + ((ks >> 1) % 6) * 16 + ((ks & 1) * 2 + rb) * 4


def acc(db, rb):
    return ACC + (db >> 1) * 16 + rb * 8 + (db & 1) * 4


def sreg(buf, kb, rb):
    return SB[buf] + ((kb >> 1) * 2 + rb) * 8 + (kb & 1) * 4


class G:
    def __init__(self, C):
        self.C = C
        self.ops = []
        self.tn = [0, 0]

    def op(self, text, tag=None, **kw):
        o = Op(Ins(text, tag), **kw)
        self.ops.append(o)
        return o

    def stemp(self, k=0):
        self.tn[k] += 1
        return (sT, sT2)[k][self.tn[k] % 4]


def stage_of(pair, k):
    a, b = pair
    ph = pair[k]
    if ph[0] == 'K':
        return 0
    if ph[0] == 'V':
        return 1
    other = pair[1 - k]
    if other[0] == 'K':
        return 1
    if other[0] == 'V':
        return 0
    return k


def dma_list(pair, p, g):
    L = []
    z = p & 1
    bump = False
    for k in range(2):
        ph = pair[k]
        base = z * SETB + stage_of(pair, k) * STAGE
        for half in range(2):
            for j in range(4):
                sc = []
                if ph[0] == 'K':
                    if j == 0:
                        sc.append('s_add_u32 m0, s%d, %d' % (sMK, base + half * TILE))
                    d = 'buffer_load_dwordx4 v%d, %s, s%d offen offset:%d lds' % (vG, sr(sK, 4), sOK + half * 4 + j, IMMK[j])
                    bump = True
                elif ph[0] == 'V':
                    if j == 0:
                        sc.append('s_add_u32 m0, s%d, %d' % (sMV, base + half * TILE))
                    d = 'buffer_load_dwordx4 v%d, %s, s%d offen offset:%d lds' % (vG, sr(sV, 4), sOV + half * 4 + j, IMMV[j])
                    bump = True
                elif ph[0] == 'Q':
                    if j == 0:
                        sc.append('s_add_u32 m0, s%d, %d' % (sMV, base + half * TILE))
                    t = g.stemp()
                    sc.append('s_mov_b32 s%d, %d' % (t, (64 * ph[1] + 32 * half + ROWJ[j]) * 8192 - IMMV[j]))
                    d = 'buffer_load_dwordx4 v%d, %s, s%d offen offset:%d lds' % (vGq, sr(sWQ, 4), t, IMMV[j])
                else:
                    if j == 0:
                        sc.append('s_add_u32 m0, s%d, %d' % (sMO, base + half * 4096))
                    t = g.stemp()
                    sc.append('s_mov_b32 s%d, %d' % (t, (half * 4 + j) * 7168 - j * 1024 + 128 * ph[1]))
                    d = 'buffer_load_dwordx4 v%d, %s, s%d offen offset:%d lds' % (vGo, sr(sWO, 4), t, j * 1024)
                L.append((sc, d))
    return L, bump


def xh_load(g, ks, rb):
    t = g.stemp(1)
    return ('s_add_u32 s%d, s%d, %d' % (t, sXH, rb * 14336 + (ks & ~3) * 1024),
            'buffer_load_dwordx4 %s, v%d, %s, s%d offen offset:%d' % (vr(hreg(ks, rb), 4), vX, sr(sWS, 4), t, (ks & 3) * 1024))


def modulate(ks, pr, temps):
    out = []
    n = 0
    for hf in range(2):
        rd = ['ds_read_b128 %s, v%d offset:%d' % (vr(pr + hf * 8 + 4 * i, 4), vP, ks * 256 + hf * 32 + 16 * i) for i in range(2)]
        va = []
        for rb in range(2):
            for dd in range(2):
                h = hreg(ks, rb) + 2 * hf + dd
                t0, t1 = temps[(2 * n) % len(temps)], temps[(2 * n + 1) % len(temps)]
                n += 1
                c = pr + hf * 8 + 2 * dd
                va.append('v_fma_mix_f32 v%d, v%d, v%d, v%d op_sel_hi:[1,0,0]' % (t0, h, c, c + 4))
                va.append('v_fma_mix_f32 v%d, v%d, v%d, v%d op_sel:[1,0,0] op_sel_hi:[1,0,0]' % (t1, h, c + 1, c + 5))
                va.append('v_cvt_pk_bf16_f32 v%d, v%d, v%d' % (h, t0, t1))
        out.append((rd, va))
    return out


def build(C, CT):
    g = G(C)
    NM = C.NMID
    pairs = [(('Q', 0), ('Q', 1)), (('Q', 2), ('Q', 3)), (('Q', 4), ('Q', 5)), (('Q', 6), ('K', 0))]
    pairs += [(('K', t + 1), ('V', t)) for t in range(NM)]
    pairs += [(('V', NM), ('O', 0)), (('O', 1), ('O', 2)), (('O', 3), ('O', 4)), (('O', 5), ('O', 6))]
    NP = len(pairs)
    bar = lambda p: 128 * p + 128 - C.LEAD
    for p, pair in enumerate(pairs):
        z = p & 1
        g0 = 128 * p
        wlo = bar(p - 1) + 1 if p else -30
        whi = bar(p) - C.RW if p + 1 < NP else g0 + 110
        if p < NP - 1:
            L, bump = dma_list(pairs[p + 1], p + 1, g)
            tg = 10
            if p == 0 and C.PRE_D1:
                L = []
            step = C.DSTEP if pair[0][0] == 'K' else C.DSTEP2
            dlo = max(wlo, 2)
            for n, (sc, d) in enumerate(L):
                tg = dlo + 1 + int(n * step)
                for s in sc:
                    g.op(s, tgt=tg - 3, lo=max(dlo - 3, 0))
                g.op(d, tag='D%d' % (p + 1), tgt=tg, lo=dlo, hi=bar(p) - 30, early=False)
            if bump:
                g.op('v_add_u32 v%d, 0x8000, v%d' % (vG, vG), tgt=tg + 2)
            if C.warm and p in (0, 2, 4, 6):
                k = p // 2
                t = sWV
                g.op('s_add_u32 s%d, s%d, %d' % (t, sWK, k * 262144), tgt=tg, lo=tg - 4)
                g.op('buffer_load_dword a%d, v%d, %s, s%d offen' % (244 + k, vW, sr(sWM, 4), t), tgt=tg + 3, lo=tg + 1, early=False)
        if p == 0:
            g.op('s_waitcnt vmcnt(@D0b)', gap=C.BAR0)
            g.op('s_barrier', gap=C.BAR0 + 1)
        if p == NM + 2 and C.warm:
            g.op('buffer_load_dword a248, v%d, %s, s%d offen' % (vW, sr(sWO, 4), sWO2), tgt=g0 + 52, early=False)
        if p == NM + C.PFP and C.pf:
            a, b = vF, vF + 1
            g.op('v_lshrrev_b32 v%d, 8, v%d' % (a, vX), tgt=g0 + 40, lo=g0 + 20)
            g.op('v_mul_u32_u24 v%d, 3584, v%d' % (a, a), tgt=g0 + 40)
            g.op('v_lshlrev_b32 v%d, 3, v%d' % (b, vX), tgt=g0 + 40, lo=g0 + 20)
            g.op('v_and_b32 v%d, 0x780, v%d' % (vF + 2, b), tgt=g0 + 40)
            g.op('v_add_u32 v%d, v%d, v%d' % (a, a, vF + 2), tgt=g0 + 40)
            for n, (r, srd, so) in enumerate([(a, 60, 72), (a, 64, 72), (b, 68, 73), (b, 68, 74), (b, 92, 73)]):
                if C.pf & (1 << (n // 2)):
                    g.op('buffer_load_dword a%d, v%d, %s, s%d offen' % (239 + n, r, sr(srd, 4), so), tgt=g0 + 56 + 6 * n, early=False)
        if p >= 5 and p & 1 and p <= NM + 2:
            g.op('s_cbranch_scc1 L_loop', gap=g0, tag='blk')
            g.op('s_sub_u32 s%d, s%d, 1' % (sCNT, sCNT), gap=g0 + 254)
            g.op('s_cmp_lg_u32 s%d, 0' % sCNT, gap=g0 + 255)
        units = 0.0
        for k in range(2):
            ph = pair[k]
            typ, idx = ph
            b0 = g0 + 64 * k
            st = stage_of(pair, k) * STAGE
            if typ in 'QV':
                if typ == 'Q' and idx == 6:
                    order = [(db, rb, kt) for rb in range(2) for db in range(16) for kt in range(2)]
                else:
                    order = [(db, rb, kt) for db in range(16) for rb in range(2) for kt in range(2)]
            elif typ == 'K' and idx == 0:
                order = [(kb, rb, ks) for kt in range(2) for rb in range(2) for kb in (2 * kt, 2 * kt + 1) for ks in range(8)]
            else:
                order = [(kb, rb, ks) for kb in range(4) for rb in range(2) for ks in range(8)]
            if typ == 'O' and idx == 0:
                for t in gen_tail.rp_addr(None, gen_tail.vRP, 11) + ['s_add_u32 s%d, s%d, 14336' % (sWV, sSL)]:
                    g.op(t, tgt=g0 - 50, lo=g0 - 100)
                for s in range(2):
                    for cb in range(4):
                        r = vO + s * 4 + cb
                        if cb == 0:
                            g.op('v_add_u32 v%d, %d, v%d' % (r, s * SETB, vB0), tgt=g0 - 60)
                        else:
                            g.op('v_xor_b32 v%d, %d, v%d' % (r, cb * 32, vO + s * 4), tgt=g0 - 60)
            for f in range(32):
                tg = lambda: wlo + int(units * (whi - wlo) / 128.0)
                if p == 0 and k == 1:
                    wlo = C.BAR0 + 1
                    tg = lambda: wlo + int((units - 64) * (whi - wlo) / 64.0)
                if typ == 'K':
                    kb, ks = f >> 3, f & 7
                    g.op('ds_read_b128 %s, v%d offset:%d' % (ar(4 * f, 4), vK[z], st + (kb >> 1) * TILE + (kb & 1) * 512 + ks * 64),
                         tgt=tg(), lo=wlo, hi=whi, early=False)
                    units += 2
                else:
                    for u in range(2):
                        if typ == 'O':
                            cb, ks = f >> 3, f & 7
                            a, off = vO + z * 4 + cb, st + ks * 4096 + u * 2048
                        else:
                            db, kt = f >> 1, f & 1
                            a, off = vV[z], st + kt * TILE + u * 512 + db * 32
                        g.op('ds_read_b64_tr_b16 %s, v%d offset:%d' % (ar(4 * f + 2 * u, 2), a, off), tgt=tg(), lo=wlo, hi=whi, early=False)
                        units += 1
            if typ == 'Q' and idx >= 1:
                W = 62
                if idx >= C.PRE_X:
                    for n, (ks, rb) in enumerate([(2 * idx, 0), (2 * idx, 1), (2 * idx + 1, 0), (2 * idx + 1, 1)]):
                        s, d = xh_load(g, ks, rb)
                        tg0 = max(1, (idx - 1) * W - C.XT) + 3 * n
                        g.op(s, tgt=tg0 - 1, lo=max(0, tg0 - 4))
                        g.op(d, tgt=tg0, lo=0, early=False)
                n = 0
                for ks in (2 * idx, 2 * idx + 1):
                    for rd, va in modulate(ks, PR, vT):
                        for t in rd:
                            g.op(t, tgt=(idx - 1) * W + n * W // 48 - 12, lo=C.BAR0 + 1 if idx > 1 else -BIG)
                        for t in va:
                            g.op(t, tgt=(idx - 1) * W + n * W // 48, lo=max(0, (idx - 1) * W - 10))
                            n += 1
            if typ == 'K' and idx == 0:
                for r in vL:
                    g.op('v_mov_b32 v%d, 0' % r, tgt=g0)
            done = {}
            for m, (x, rb, y) in enumerate(order):
                if typ in 'QV':
                    d = vr(acc(x, rb), 4)
                    a = ar(4 * (2 * x + y), 4)
                    b = vr(hreg(2 * idx + y, rb), 4) if typ == 'Q' else vr(SB[idx & 1] + (y * 2 + rb) * 8, 4)
                    c = '0' if idx == 0 and y == 0 else d
                else:
                    d = vr(sreg(idx & 1, x, rb), 4)
                    a = ar(4 * (8 * x + y), 4)
                    if typ == 'K':
                        b = ar(QA + (y * 2 + rb) * 4, 4)
                        c = d if y else ('0' if idx == 0 and x < 2 else vr(NEGM + 4 * rb, 4))
                    else:
                        b = vr(ACC + y * 16 + rb * 8, 4)
                        c = d if y else '0'
                g.op('%s %s, %s, %s, %s' % (MF, d, a, b, c), gap=b0 + m, tag=('G', b0 + m))
                if typ == 'K' and idx == 0 and x == 1 and y == 7:
                    s = SB[0] + rb * 8
                    m0_, m1_ = vM[2 * rb], vM[2 * rb + 1]
                    T = ['v_accvgpr_read_b32 v%d, a%d' % (m0_, vFL[rb]), 'v_max3_f32 v%d, v%d, v%d, v%d' % (m0_, s, s + 1, m0_)]
                    T += ['v_max3_f32 v%d, v%d, v%d, v%d' % (m0_, m0_, s + i, s + i + 1) for i in (2, 4, 6)]
                    for sw in ('32', '16'):
                        T += ['v_mov_b32 v%d, v%d' % (m1_, m0_), 'v_permlane%s_swap_b32 v%d, v%d' % (sw, m0_, m1_),
                              'v_max_f32 v%d, v%d, v%d' % (m0_, m0_, m1_)]
                    T += ['v_sub_f32 v%d, 0, v%d' % (NEGM + 4 * rb + i, m0_) for i in range(4)]
                    for t in T:
                        g.op(t, tgt=b0)
            if typ == 'Q' and idx == 6:
                for rb in range(2):
                    for e in range(8):
                        r = ACC + e * 16 + rb * 8
                        tg = b0 + rb * 32 + e * 4 + 8
                        for i in range(4):
                            g.op('v_cvt_pk_bf16_f32 v%d, v%d, v%d' % (r + i, r + 2 * i, r + 2 * i + 1), tgt=tg)
                        for i in range(2):
                            g.op('v_permlane16_swap_b32 v%d, v%d' % (r + i, r + 2 + i), tgt=tg)
                        for i in range(4):
                            g.op('v_accvgpr_write_b32 a%d, v%d' % (QA + (e * 2 + rb) * 4 + i, r + i), tgt=tg)
            if typ == 'K':
                T = []
                for kt in range(2):
                    for half in range(2):
                        for rb in range(2):
                            if idx == 0:
                                half_, rb_ = rb, half
                            else:
                                half_, rb_ = half, rb
                            r = SB[idx & 1] + (kt * 2 + rb_) * 8
                            for i in (2 * half_, 2 * half_ + 1):
                                a, b = r + 2 * i, r + 2 * i + 1
                                if idx == 0 and kt == 0:
                                    T += ['v_add_f32 v%d, v%d, v%d' % (x, x, NEGM + 4 * rb_) for x in (a, b)]
                                T += ['v_exp_f32 v%d, v%d' % (a, a), 'v_exp_f32 v%d, v%d' % (b, b),
                                      'v_add_f32 v%d, v%d, v%d' % (vL[2 * rb_], vL[2 * rb_], a),
                                      'v_add_f32 v%d, v%d, v%d' % (vL[2 * rb_ + 1], vL[2 * rb_ + 1], b),
                                      'v_cvt_pk_bf16_f32 v%d, v%d, v%d' % (r + i, a, b)]
                span, off = (96, 28) if idx == 0 else (128, 30)
                if idx == NM:
                    span, off = 100, 20
                for n, t in enumerate(T):
                    g.op(t, tgt=b0 + off + n * span // len(T))
                if idx == NM:
                    T = []
                    for rb in range(2):
                        a, b = vL[2 * rb], vL[2 * rb + 1]
                        T += ['v_add_f32 v%d, v%d, v%d' % (a, a, b)]
                        for sw in ('32', '16'):
                            T += ['v_mov_b32 v%d, v%d' % (b, a), 'v_permlane%s_swap_b32 v%d, v%d' % (sw, a, b),
                                  'v_add_f32 v%d, v%d, v%d' % (a, a, b)]
                        T += ['v_rcp_f32 v%d, v%d' % (b, a)]
                    T += ['v_add_f32 v%d, v%d, v%d' % (vM[1], vL[0], vL[2]),
                          'v_cmp_ngt_f32 vcc, 0x5f800000, v%d' % vM[1],
                          's_or_b32 s%d, vcc_lo, vcc_hi' % sBAD,
                          'v_mov_b32 v%d, s%d' % (vM[1], sBAD),
                          'v_mov_b32 v%d, s%d' % (vM[2], sWW),
                          'ds_write_b32 v%d, v%d' % (vM[2], vM[1])]
                    for n, t in enumerate(T):
                        g.op(t, tgt=b0 + 140 + n, hi=bar(p + 1) - C.RW)
                    g.op('v_mov_b32 v%d, %d' % (vM[3], FLAG), tgt=b0 + 150)
                    g.op('ds_read_b128 %s, v%d' % (vr(vF, 4), vM[3]), lo=bar(p + 1) + 1, tgt=bar(p + 1) + 10)
            if typ == 'V' and idx == NM:
                for e in range(8):
                    for rb in range(2):
                        r = ACC + e * 16 + rb * 8
                        for i in range(4):
                            g.op('v_cvt_pk_bf16_f32 v%d, v%d, v%d' % (r + i, r + 2 * i, r + 2 * i + 1), tgt=b0 + e * 8 + 10)
            if typ == 'O':
                for cp in range(2):
                    for rb in range(2):
                        r = SB[idx & 1] + (cp * 2 + rb) * 8
                        tg = b0 + cp * 32 + rb * 8 + 28
                        for i in range(8):
                            g.op('v_mul_f32 v%d, v%d, v%d' % (r + i, r + i, vL[2 * rb + 1]), tgt=tg - (16 if i < 4 else 0))
                        for i in range(4):
                            g.op('v_cvt_pk_bf16_f32 v%d, v%d, v%d' % (r + i, r + 2 * i, r + 2 * i + 1), tgt=tg)
                        kk = 2 * idx + cp
                        g.op('buffer_store_dwordx4 %s, v%d, %s, s%d offen offset:%d%s' % (vr(r, 4), gen_tail.vRP, sr(sWS, 4), (sSL, sWV)[rb], kk * 128, C.store_flags), tgt=tg + 3)
        if p == NP - 1:
            A, L, pl = gen_tail.s3_early(CT)
            for n, t in enumerate(A):
                g.op(t, tgt=g0 - 60 + n, lo=g0 - 80)
            tg = wlo + 1
            for n, t in enumerate(L):
                g.op(t, tgt=tg + 3 * n, lo=wlo, early=False)
            g.op(pl, tgt=g0 + C.E3, lo=wlo, early=False)
        if p + 1 < NP:
            g.op('s_waitcnt vmcnt(@D%d) lgkmcnt(0)' % (p + 1), gap=bar(p))
            g.op('s_barrier', gap=bar(p) + 1)
    return g, pairs


def gen(C, CT, kname='k2_kernel'):
    g, pairs = build(C, CT)
    NP = len(pairs)
    NM = C.NMID
    logical = list(g.ops)
    pre, gaps, post = schedule(g.ops, NP * 128, 'k2')
    lin = pre + flatten(gaps) + post
    verify(logical, lin)
    if C.verbose:
        for p in range(NP):
            gg = gaps[128 * p:128 * p + 128]
            pat = ' '.join(''.join(o.cls for o in sc + vec) or '.' for m, sc, vec in gg)
            print(p, pairs[p], model_cycles([o.ins for o in flatten(gg)]), pat, file=sys.stderr)
    P = Prog()
    P.e("""
s_cmp_ge_u32 s2, 256
s_cbranch_scc1 L2_end
s_load_dwordx4 s[60:63], s[0:1], 8
s_load_dwordx4 s[64:67], s[0:1], 24
s_load_dwordx2 s[68:69], s[0:1], 104
s_load_dwordx4 s[92:95], s[0:1], 48
s_load_dwordx2 s[96:97], s[0:1], 64
s_load_dwordx2 s[98:99], s[0:1], 0
""")
    if C.stamps:
        P.e('s_memtime s[80:81]\ns_memrealtime s[100:101]')
    P.e("""
v_lshrrev_b32 v20, 6, v0
v_and_b32 v21, 63, v0
v_and_b32 v22, 15, v0
v_readfirstlane_b32 s48, v20
v_bfe_u32 v23, v0, 4, 2
v_bfe_u32 v24, v0, 5, 1
v_and_b32 v25, 31, v0
v_lshlrev_b32 v8, 4, v21
s_and_b32 s70, s2, 7
s_lshr_b32 s71, s2, 3
s_and_b32 s72, s71, 1
s_lshl_b32 s73, s70, 1
s_add_u32 s72, s72, s73
s_lshr_b32 s73, s71, 1
s_lshl_b32 s74, s73, 3
s_lshl_b32 s75, s48, 1
s_add_u32 s74, s74, s75
s_mul_i32 s50, s74, 14336
s_mul_i32 s51, s72, %d
s_add_u32 s51, s51, s50
s_add_u32 s51, s51, %d
s_mul_i32 s40, s48, 4160
s_mul_i32 s41, s48, 4256
s_lshl_b32 s42, s48, 13
s_lshl_b32 s59, s48, 12
s_add_u32 s59, s59, %d
s_lshl_b32 s56, s48, 2
s_add_u32 s56, s56, %d
s_lshl_b32 s54, s71, 13
s_and_b32 s55, s48, 1
s_lshl_b32 s55, s55, 12
s_add_u32 s54, s54, s55
s_mul_i32 s57, s74, 1792
s_mul_i32 s58, s74, 28672
s_mov_b32 s49, 0
""" % (ACT, WS_SLAB, PAR, FLAG))
    P.e(gen_tail.MAP4.format(a=43, b=44, r=45, c=53))
    P.e('s_lshl_b32 s53, s53, 8\ns_sub_u32 s53, 4096, s53')
    for half in range(2):
        for j in range(4):
            P.e('s_mov_b32 s%d, %d' % (sOK + half * 4 + j, half * 16384 + ROWJ[j] * 512 - IMMK[j] + 16))
            P.e('s_mov_b32 s%d, %d' % (sOV + half * 4 + j, half * 16384 + ROWJ[j] * 512 - IMMV[j] + 128))
    P.e("""
v_lshl_add_u32 v26, v24, 4, v20
v_lshlrev_b32 v27, 4, v25
v_lshl_add_u32 v6, v26, 9, v27
v_lshl_add_u32 v5, v26, 13, v27
v_accvgpr_write_b32 a252, v6
v_lshl_add_u32 v7, v23, 6, s59
v_mov_b32 v13, 0xff800000
v_lshlrev_b32 v9, 6, v21
v_accvgpr_write_b32 a250, v13
v_accvgpr_write_b32 a251, v13
v_lshrrev_b32 v26, 2, v22
v_mul_u32_u24 v1, 4256, v26
v_and_b32 v27, 1, v23
v_mul_u32_u24 v28, 2176, v27
v_add_u32 v1, v1, v28
v_lshrrev_b32 v28, 1, v23
v_lshl_add_u32 v1, v28, 10, v1
v_and_b32 v29, 3, v22
v_lshl_add_u32 v1, v29, 3, v1
v_add_u32 v2, %d, v1
v_mul_u32_u24 v3, 4160, v29
v_and_b32 v30, 1, v26
v_mul_u32_u24 v30, 2064, v30
v_add_u32 v3, v3, v30
v_lshrrev_b32 v30, 3, v22
v_lshl_add_u32 v3, v30, 10, v3
v_lshl_add_u32 v3, v27, 5, v3
v_lshl_add_u32 v3, v28, 4, v3
v_add_u32 v4, %d, v3
v_lshl_add_u32 v30, v23, 2, v26
v_lshlrev_b32 v15, 7, v30
v_bfe_u32 v30, v30, 1, 2
v_lshl_add_u32 v15, v30, 5, v15
v_lshl_add_u32 v15, v29, 3, v15
v_lshrrev_b32 v30, 3, v21
v_and_b32 v26, 7, v21
v_lshlrev_b32 v14, 13, v30
v_lshl_add_u32 v14, v26, 6, v14
v_lshl_add_u32 v30, v20, 6, v30
v_mul_u32_u24 v30, 896, v30
v_lshlrev_b32 v31, 1, v23
v_xor_b32 v31, v31, v26
v_lshl_add_u32 v0, v31, 4, v30
s_lshl_b32 s70, s70, 20
s_lshl_b32 s71, s72, 9
s_mul_i32 s72, s72, 229376
s_waitcnt lgkmcnt(0)
s_add_u32 s12, s64, s71
s_addc_u32 s13, s65, 0
s_sub_u32 s14, %d, s71
s_mov_b32 s15, 0x20000
s_mov_b32 s20, s68
s_mov_b32 s21, s69
s_mov_b32 s22, %d
s_mov_b32 s23, 0x20000
s_add_u32 s4, s60, s70
s_addc_u32 s5, s61, 0
s_sub_u32 s4, s4, 16
s_subb_u32 s5, s5, 0
s_mov_b32 s6, 0x100010
s_mov_b32 s7, 0x20000
s_add_u32 s8, s62, s70
s_addc_u32 s9, s63, 0
s_sub_u32 s8, s8, 0x8080
s_subb_u32 s9, s9, 0
s_mov_b32 s10, 0x108080
s_mov_b32 s11, 0x20000
s_add_u32 s16, s66, s72
s_addc_u32 s17, s67, 0
s_mov_b32 s18, 229376
s_mov_b32 s19, 0x20000
""" % (SETB, SETB, 448 * 8192, WS_SIZE))
    P.e("""
s_cmp_lt_u32 s48, 2
s_cselect_b32 s76, s60, s62
s_cselect_b32 s77, s61, s63
s_add_u32 s76, s76, s70
s_addc_u32 s77, s77, 0
s_mov_b32 s78, 0x100000
s_mov_b32 s79, 0x20000
s_sub_u32 s60, s92, s53
s_subb_u32 s61, s93, 0
s_add_u32 s62, s53, 1605632
s_mov_b32 s63, 0x20000
s_sub_u32 s64, s94, s53
s_subb_u32 s65, s95, 0
s_mov_b32 s66, s62
s_mov_b32 s67, 0x20000
s_mov_b32 s3, s98
s_mov_b32 s52, s99
s_mov_b32 s68, s96
s_mov_b32 s69, s97
s_mov_b32 s70, 1605632
s_mov_b32 s71, 0x20000
s_lshr_b32 s72, s2, 3
s_lshl_b32 s72, s72, 2
s_add_u32 s72, s72, s48
s_lshl_b32 s73, s72, 13
s_add_u32 s74, s73, 0x100000
s_mul_i32 s72, s72, 14336
s_and_b32 s75, s2, 1
s_mul_i32 s75, s75, 1792
s_add_u32 s72, s72, s75
s_add_u32 s72, s72, s53
s_getpc_b64 s[92:93]
L2_pc:
s_add_u32 s92, s92, L2_tail-L2_pc
s_addc_u32 s93, s93, 0
s_mov_b32 s94, L2_end-L2_tail
s_mov_b32 s95, 0x20000
L2_restart:
""")
    Q = Prog()
    Q.e('s_mov_b32 m0, s59\ns_mov_b32 s43, %d' % WS_PAR)
    Q.e('buffer_load_dwordx4 v8, s[20:23], s43 offen lds', tag='PAR')
    L, _ = dma_list(pairs[0], 0, g)
    for half in range(2):
        for ks in (2 * half, 2 * half + 1):
            for rb in range(2):
                s, d = xh_load(g, ks, rb)
                Q.e(s)
                Q.e(d)
        for sc, d in L[8 * half:8 * half + 8]:
            for s in sc:
                Q.e(s)
            Q.e(d, tag='D0' + 'ab'[half])
    Q.e('s_mov_b32 m0, s59\ns_mov_b32 s43, %d' % WS_PAR)
    for j in range(1, 4):
        Q.e('buffer_load_dwordx4 v8, s[20:23], s43 offen offset:%d lds' % (1024 * j), tag='D0b')
    if C.warm:
        Q.e('buffer_load_dword a249, v14, s[12:15], s58 offen')
    Q.e('s_waitcnt vmcnt(@PAR)')
    for ks in range(2):
        for rd, va in modulate(ks, ACC + 16 * ks, vT):
            for t in rd:
                Q.e(t)
    tmp = list(range(200, 216))
    for ks in range(2):
        for rd, va in modulate(ks, ACC + 16 * ks, tmp):
            for t in [x for x in va if 'fma' in x] + [x for x in va if 'cvt' in x]:
                Q.e(t)
    for ks in range(4, 2 * C.PRE_X):
        for rb in range(2):
            s, d = xh_load(g, ks, rb)
            Q.e(s)
            Q.e(d)
        if ks == 5 and C.PRE_D1:
            for sc, d in dma_list(pairs[1], 1, g)[0]:
                for s in sc:
                    Q.e(s)
                Q.e(d, tag='D1')
    Q.e('s_waitcnt vmcnt(@D0a)\ns_barrier')
    Q.e('; T1')
    Q.ext([o.ins for o in pre])
    Q.e('s_mov_b32 s%d, NTRIPS' % sCNT)
    Q.ext([o.ins for o in flatten(gaps)])
    Q.e('s_nop 7')
    Q.ext([o.ins for o in post])
    Q.e('v_or3_b32 v%d, v%d, v%d, v%d' % (vF, vF, vF + 1, vF + 2))
    Q.e('v_or_b32 v%d, v%d, v%d' % (vF, vF, vF + 3))
    Q.e('s_nop 0\nv_readfirstlane_b32 s%d, v%d' % (sBAD, vF))
    seq, _, _ = add_waits(Q.ins)
    cuts = [n for n, i in enumerate(seq) if i.tag == 'blk']
    blocks = [seq[cuts[k] + 1:cuts[k + 1]] for k in range(len(cuts) - 1)]
    txt = [[i.text for i in b] for b in blocks]
    k0 = next(k for k in range(len(blocks) - 1) if all(txt[k] == txt[j] for j in range(k, len(blocks))))
    assert len(blocks) - k0 >= 2
    trips = 14 - k0
    head = [i for i in seq[:cuts[k0]] if i.tag != 'blk']
    body = blocks[k0]
    tail = seq[cuts[-1] + 1:]
    print('k2: peeled blocks %d trips %d; model cycles head %d body %d (ideal %d) tail %d' % (
        k0, trips, model_cycles(head), model_cycles(body), 256 * 16, model_cycles(tail)), file=sys.stderr)
    for n, i in enumerate(head):
        if 'NTRIPS' in i.text:
            head[n] = Ins('s_mov_b32 s%d, %d' % (sCNT, trips + k0))
    i = max(n for n, x in enumerate(body) if x.op == 's_cmp_lg_u32')
    assert all(x.kind != 'salu' or x.op == 's_waitcnt' for x in body[i + 1:])

    SG = list(C.stamp_gaps)

    def stamped(L):
        out = []
        for x in L:
            out.append(x)
            if C.stamps and isinstance(x.tag, tuple) and x.tag[1] in SG:
                n = SG.index(x.tag[1])
                out.append(Ins('s_memtime s[%d:%d]' % (82 + 2 * n, 83 + 2 * n)))
        return out
    P.ext(stamped(head))
    if C.xdrop:
        nb, k = [], 0
        for x in body:
            drop = False
            if x.kind == 'lds':
                k += 1
                drop = 'R' in C.xdrop or ('r' in C.xdrop and (k >> 1) & 1)
            if x.op == 'v_add_f32' and 'a' in C.xdrop:
                drop = True
            if x.kind == 'dma' and 'd' in C.xdrop:
                drop = True
            if not drop:
                nb.append(x)
        body = nb
    P.e('L_loop:')
    P.ext(body)
    P.e('s_cbranch_scc1 L_loop')
    P.ext(stamped(tail))
    P.e('s_cmp_lg_u32 s%d, 0\ns_cselect_b32 s%d, 0, s%d' % (sPASS, sBAD, sBAD))
    if not C.xdrop:
        P.e('s_cmp_lg_u32 s%d, 0\ns_cbranch_scc1 L2_fb' % sBAD)
    if C.stamps:
        P.e('s_memtime s[90:91]')
    nmain = len(P.ins)
    P.e('L2_tail:')
    CT.stamps = C.stamps
    P.ext(gen_tail.tail(CT).ins)
    P.e('L2_fin:')
    if C.stamps:
        P.e("""
s_waitcnt vmcnt(0)
s_memrealtime s[64:65]
s_lshl_b32 s47, s2, 3
s_add_u32 s47, s47, s48
s_lshl_b32 s47, s47, 6
s_add_u32 s47, s47, %d
s_waitcnt lgkmcnt(0)
""" % (WS_DBG + 2 * 0x40000))
        for n in range(5):
            P.e('s_sub_u32 s%d, s%d, s80\nv_mov_b32 v%d, s%d' % (82 + 2 * n, 82 + 2 * n, 20 + n, 82 + 2 * n))
        for n in range(6):
            P.e('v_mov_b32 v%d, s%d' % (25 + n, 28 + 2 * n))
        P.e("""
v_mov_b32 v31, s64
v_mov_b32 v32, s100
v_mov_b32 v33, s8
v_mov_b32 v34, s10
v_mov_b32 v36, 0
buffer_store_dwordx4 v[20:23], v36, s[20:23], s47 offen
buffer_store_dwordx4 v[24:27], v36, s[20:23], s47 offen offset:16
buffer_store_dwordx4 v[28:31], v36, s[20:23], s47 offen offset:32
buffer_store_dwordx4 v[32:35], v36, s[20:23], s47 offen offset:48
""")
    P.e('L2_end:\ns_endpgm')
    F = Prog()
    F.e("""
L2_fb:
v_mov_b32 v12, 0xff800000
v_mov_b32 v13, 0xff800000
s_mov_b32 s49, 1
s_mov_b32 s47, 32
v_accvgpr_read_b32 v6, a252
s_waitcnt vmcnt(0) lgkmcnt(0)
s_barrier
L2_fbl:
""")
    for half in range(2):
        F.e('s_add_u32 m0, s%d, %d\ns_nop 0' % (sMK, half * TILE))
        for j in range(4):
            F.e('buffer_load_dwordx4 v%d, %s, s%d offen offset:%d lds' % (vG, sr(sK, 4), sOK + half * 4 + j, IMMK[j]))
    F.e('v_add_u32 v6, 0x8000, v6\ns_waitcnt vmcnt(0)\ns_barrier')
    for f in range(32):
        kb, ks = f >> 3, f & 7
        F.e('ds_read_b128 %s, v%d offset:%d' % (ar(4 * f, 4), vK[0], (kb >> 1) * TILE + (kb & 1) * 512 + ks * 64))
    F.e('s_waitcnt lgkmcnt(0)\ns_barrier')
    for kb in range(4):
        for rb in range(2):
            for ks in range(8):
                d = vr(sreg(0, kb, rb), 4)
                F.e('%s %s, %s, %s, %s' % (MF, d, ar(4 * (8 * kb + ks), 4), ar(QA + (ks * 2 + rb) * 4, 4), d if ks else '0'))
    F.e('s_nop 7')
    for kb in range(4):
        for rb in range(2):
            r = sreg(0, kb, rb)
            for i in (0, 2):
                F.e('v_max3_f32 v%d, v%d, v%d, v%d' % (12 + rb, 12 + rb, r + i, r + i + 1))
    F.e("""
s_sub_u32 s47, s47, 1
s_cmp_lg_u32 s47, 0
s_cbranch_scc1 L2_fbl
v_accvgpr_write_b32 a250, v12
v_accvgpr_write_b32 a251, v13
v_accvgpr_read_b32 v6, a252
s_branch L2_restart
""")
    lin = P.ins[:nmain + 40]
    li = [n for n, i in enumerate(lin) if i.label == 'L_loop'][0]
    le = [n for n, i in enumerate(lin) if i.text.startswith('s_cbranch_scc1 L_loop')][0]
    lin = lin[:le + 1] + lin[li:le + 1] + lin[le + 1:]
    for p in check_hazards(lin) + check_hazards(F.ins + F.ins):
        print('HAZARD', p, file=sys.stderr)
    P.ext(F.ins)
    P.e('L2_codeend:')
    code = khead(kname) + P.text().replace('L_loop', 'L2_loop')
    return code, kernel_desc(kname, 512, 256), '; @launch kernel=%s grid=(256,1,1) block=(256,1,1) lds=%d' % (kname, LDS_BYTES)


def assemble(parts):
    hdr = '\n'.join(p[2] for p in parts) + '\n.amdgcn_target "amdgcn-amd-amdhsa--gfx950"\n'
    return hdr + ''.join(p[0] for p in parts) + ''.join(p[1] for p in parts)


if __name__ == '__main__':
    C = Cfg()
    out = sys.argv[1]
    for a in sys.argv[2:]:
        k, v = a.split('=', 1)
        setattr(C, k, eval(v))
    open(out, 'w').write(assemble([gen(C)]))
```

```python
import sys
from asmlib import *
from sched2 import *
from common import *
from gen_k1 import fix_hazards, f32

MF = 'v_mfma_f32_16x16x32_bf16'
WS = 's[20:23]'
vX, vRP, vPOLL, vONE = 8, 10, 15, 11
sT, sT2 = [40, 41, 42, 43], [44, 45, 46, 47]
SPIN = 1 << 17
ST0 = 28


class Cfg:
    ld = ' sc1'
    ld3 = ' sc1'
    ld4 = ' sc1'
    ld5 = ' sc1'
    st4 = ' sc1'
    st = ' sc1'
    sleep = 2
    stamps = False
    BOFF = 10
    HPRE4 = 2
    HSTEP4 = 5
    WSTEP = 5
    HPRE5 = 5
    HSTEP5 = 4
    verbose = False
    dbg3 = 0
    wpf = 0
    mt = []


def stamp(P, C, k):
    if C.stamps:
        P.e('s_memrealtime s[%d:%d]' % (ST0 + 2 * k, ST0 + 2 * k + 1))


def rp_addr(P, d, t):
    return ['v_bfe_u32 v%d, v%d, 5, 3' % (d, vX), 'v_mul_u32_u24 v%d, 1792, v%d' % (d, d),
            'v_lshrrev_b32 v%d, 8, v%d' % (t, vX), 'v_lshl_add_u32 v%d, v%d, 5, v%d' % (d, t, d),
            'v_and_b32 v%d, 16, v%d' % (t, vX), 'v_add_u32 v%d, v%d, v%d' % (d, d, t)]


def flag(P, C, soff):
    P.e('''
s_mov_b64 exec, 1
buffer_store_dword v%d, off, %s, s%d%s
s_mov_b64 exec, -1
''' % (vONE, WS, soff, C.st))


def tree(P, reg, lo, hi, lab, uid):
    if lo == hi:
        P.e('s_branch %s' % lab(lo))
        return
    if hi == lo + 1:
        P.e('s_cmp_eq_u32 s%d, %d\ns_cbranch_scc1 %s\ns_branch %s' % (reg, lo, lab(lo), lab(hi)))
        return
    mid = (lo + hi + 1) // 2
    l = '%s_%d_%d' % (uid, mid, hi)
    P.e('s_cmp_ge_u32 s%d, %d\ns_cbranch_scc1 %s' % (reg, mid, l))
    tree(P, reg, lo, mid - 1, lab, uid)
    P.e(l + ':')
    tree(P, reg, mid, hi, lab, uid)


HOLE = [128 + 8 * k + 4 for k in range(16)]
XQ, MQ = HOLE[0:2], HOLE[2:14]
QUAD = list(range(16, 80, 4)) + [128 + 8 * k for k in range(16)]
AC3 = 80
vB, vXA, vXB, vMA, vMB, vTMP, vP3, vD3 = 108, 109, 110, 111, 112, 113, 114, 115
sRP, sP3 = 75, 72


def s3_early(C):
    A = ['s_mov_b32 s76, s3', 's_mov_b32 s77, s52', 's_mov_b32 s78, %d' % ACT,
         's_lshl_b32 s%d, s2, 2' % sRP, 's_add_u32 s%d, s%d, s48' % (sRP, sRP), 's_mul_i32 s%d, s%d, 1792' % (sRP, sRP),
         's_mov_b32 s74, %d' % WS_MOD,
         's_lshr_b32 s%d, s2, 2' % sP3, 's_lshl_b32 s%d, s%d, 7' % (sP3, sP3), 's_add_u32 s%d, s%d, %d' % (sP3, sP3, WS_FLG),
         'v_add_u32 v%d, 0x100, v%d' % (vTMP, vX), 'v_lshlrev_b32 v%d, 21, v%d' % (vTMP, vTMP),
         'v_and_b32 v%d, 0x80000000, v%d' % (vTMP, vTMP),
         'v_or_b32 v%d, v%d, v%d' % (vB, vTMP, vX),
         'v_bfe_u32 v%d, v%d, 4, 1' % (vXA, vX), 'v_mul_u32_u24 v%d, 896, v%d' % (vXA, vXA),
         'v_lshrrev_b32 v%d, 7, v%d' % (vMA, vX), 'v_lshl_add_u32 v%d, v%d, 6, v%d' % (vXA, vMA, vXA),
         'v_bfe_u32 v%d, v%d, 5, 2' % (vMA, vX), 'v_lshl_add_u32 v%d, v%d, 3, v%d' % (vXA, vMA, vXA),
         'v_or_b32 v%d, v%d, v%d' % (vXB, vTMP, vXA),
         'v_and_b32 v%d, 0x3e0, v%d' % (vMA, vX),
         'v_or_b32 v%d, v%d, v%d' % (vMB, vTMP, vMA),
         'v_lshrrev_b32 v%d, 2, v%d' % (vP3, vX), 'v_and_b32 v%d, 0x7c, v%d' % (vP3, vP3)]
    L = []
    for part in range(2):
        for j in range(2):
            L.append('buffer_load_dwordx2 %s, v%d, s[76:79], s%d offen offset:%d' % (vr(XQ[part] + 2 * j, 2), (vXA, vXB)[part], sRP, 512 * part + 32 * j))
    for vec in range(3):
        for part in range(2):
            for j in range(2):
                off = vec * 1792 + part * 1024 + 16 * j
                L.append('buffer_load_dwordx4 %s, v%d, %s, s%d offen offset:%d' % (vr(MQ[vec * 4 + part * 2 + j], 4), (vMA, vMB)[part], WS, 74 if off < 4096 else 73, off & 4095))
    A.append('s_mov_b32 s73, %d' % (WS_MOD + 4096))
    return A, L, 'buffer_load_dword v%d, v%d, %s, s%d offen%s' % (vD3, vP3, WS, sP3, C.ld)


def s3(P, C, pre4, nxt, first):
    sPEND, sNEW, sN, sDONE, sSPIN, sSL, sH, sO, sC0, sC1, sFIRST = 49, 50, 51, 52, 53, 54, 56, 57, 58, 59, 55
    A = Prog()
    A.e('''
s_and_b32 s40, s2, 7
s_lshl_b32 s40, s40, 3
s_and_b32 s41, s2, 8
s_lshr_b32 s41, s41, 1
s_add_u32 s40, s40, s41
s_lshr_b32 s41, s2, 4
s_lshl_b32 s41, s41, 2
s_add_u32 s41, s41, s48
s_lshl_b32 s41, s41, 7
s_add_u32 s40, s40, s41
s_add_u32 s19, s40, {fl2}
s_and_b32 s25, s2, 3
s_lshl_b32 s25, s25, 2
s_add_u32 s25, s25, s48
s_lshl_b32 s25, s25, 2
s_add_u32 s25, s25, s{p3}
s_add_u32 s25, s25, 0x4000
s_add_u32 s{sl}, s{rp}, {slab}
s_add_u32 s26, s{rp}, {x1}
s_add_u32 s27, s{rp}, {h2}
s_mov_b32 s{pend}, 0xffff
s_mov_b32 s{spin}, 0
s_mov_b32 s{first}, 1
s_mov_b32 s{c0}, 0x3f80
s_mov_b32 s{c1}, 0x3f800000
s_cmp_ge_u32 s2, 224
s_cselect_b32 s{done}, 1, 0
v_mov_b32 v{one}, 1
v_mov_b32 v{poll}, v{vp3}
'''.format(fl2=WS_FLG, sl=sSL, rp=sRP, slab=WS_SLAB, x1=WS_X1, h2=WS_H2, pend=sPEND, spin=sSPIN, c0=sC0, c1=sC1, done=sDONE,
           one=vONE, poll=vPOLL, vp3=vP3, p3=sP3, first=sFIRST))
    for i in range(16):
        A.e('v_mov_b32 v%d, 0' % (AC3 + i))
    A.e('s_mov_b32 s10, 0')
    nxt(A)
    for t in first:
        A.e(t)
    A.e('s_waitcnt vmcnt(16)')
    flag(A, C, 19)
    stamp(A, C, 0)
    A.e('''
L3_chk:
v_cmp_ne_u32 vcc, 0, v{d}
s_nop 0
s_and_b32 s{new}, vcc_lo, s{pend}
L3_go:
s_andn2_b32 s{pend}, s{pend}, s{new}
s_bcnt1_i32_b32 s{n}, s{new}
s_cbranch_scc0 L3_i16
'''.format(d=vD3, new=sNEW, pend=sPEND, n=sN))
    if C.dbg3:
        A.e('s_memrealtime s[8:9]\ns_lshl_b32 s10, s10, 4\ns_sub_u32 s11, s%d, 1\ns_or_b32 s10, s10, s11' % sN)
    tree(A, sN, 1, 16, lambda k: 'L3_i%d' % (16 - k), 'L3_ti')
    for s in range(16):
        A.e('''
L3_i{s}:
s_ff1_i32_b32 s{h}, s{new}
s_bitset0_b32 s{new}, s{h}
s_mul_i32 s{o}, s{h}, {act}
s_add_u32 s{o}, s{o}, s{sl}
buffer_load_dwordx4 {qa}, v{x}, {ws}, s{o} offen{ld}
buffer_load_dwordx4 {qb}, v{b}, {ws}, s{o} offen offset:1024{ld}
'''.format(s=s, h=sH, new=sNEW, o=sO, act=ACT, sl=sSL, qa=vr(QUAD[2 * s], 4), qb=vr(QUAD[2 * s + 1], 4), x=vX, b=vB, ws=WS, ld=C.ld3))
    A.e('L3_i16:\nbuffer_load_dword v%d, v%d, %s, s%d offen%s' % (vD3, vP3, WS, sP3, C.ld))
    A.e('s_cmp_lg_u32 s%d, 0\ns_cbranch_scc1 L3_first\nL3_acc:' % sFIRST)
    A.e('s_cmp_eq_u32 s%d, 0\ns_cbranch_scc1 L3_idle' % sN)
    tree(A, sN, 1, 16, lambda k: 'L3_a%d' % (16 - k), 'L3_ta')
    for s in range(16):
        A.e('L3_a%d:\ns_waitcnt vmcnt(%d)' % (s, 2 * (15 - s) + 1))
        for part in range(2):
            for d in range(4):
                for e in range(2):
                    a = AC3 + part * 8 + 2 * d + e
                    A.e('v_dot2_f32_bf16 v%d, v%d, s%d, v%d' % (a, QUAD[2 * s + part] + d, (sC0, sC1)[e], a))
    A.e('s_cmp_eq_u32 s%d, 0\ns_cbranch_scc1 L3_fin\ns_waitcnt vmcnt(0)\ns_branch L3_chk' % sPEND)
    A.e('L3_first:\ns_mov_b32 s%d, 0\ns_barrier' % sFIRST)
    A.e('s_branch L3_acc')
    A.e('L3_idle:')
    A.e('s_cmp_lg_u32 s%d, 0\ns_cbranch_scc1 L3_idle2\ns_mov_b32 s%d, 1' % (sDONE, sDONE))
    for t in pre4:
        A.e(t)
    A.e('''
L3_idle2:
s_add_u32 s{spin}, s{spin}, 1
s_cmp_lt_u32 s{spin}, {lim}
s_waitcnt vmcnt(0)
s_cbranch_scc1 L3_chk
s_mov_b32 s{new}, s{pend}
s_branch L3_go
L3_fin:
'''.format(spin=sSPIN, lim=SPIN, new=sNEW, pend=sPEND))
    stamp(A, C, 1)
    T = 16
    mod = lambda vec, i: MQ[vec * 4 + (i >> 2)] + (i & 3)
    for part in range(2):
        for d in range(4):
            A.e('v_lshlrev_b32 v%d, 16, v%d\nv_and_b32 v%d, 0xffff0000, v%d' % (T + 8 * part + 2 * d, XQ[part] + d, T + 8 * part + 2 * d + 1, XQ[part] + d))
    for i in range(16):
        A.e('v_fma_f32 v%d, v%d, v%d, v%d' % (AC3 + i, AC3 + i, mod(0, i), T + i))
    S = 32
    for i in range(8):
        A.e('v_add_f32 v%d, v%d, v%d' % (S + i, AC3 + i, AC3 + 8 + i))
    for w in (4, 2, 1):
        for i in range(w):
            A.e('v_add_f32 v%d, v%d, v%d' % (S + i, S + i, S + w + i))

    def xl(r, t, fill=()):
        fill = list(fill)

        def f(n):
            for _ in range(n):
                if fill:
                    A.e(fill.pop(0))
        f(2)
        for m in ('quad_perm:[2,3,0,1]', 'row_ror:4', 'row_ror:8'):
            A.e('v_add_f32_dpp v{r}, v{r}, v{r} {m} row_mask:0xf bank_mask:0xf'.format(r=r, m=m))
            f(2)
        for sw in ('16', '32'):
            A.e('v_mov_b32 v%d, v%d' % (t, r))
            f(2)
            A.e('v_permlane{s}_swap_b32 v{r}, v{t}\nv_add_f32 v{r}, v{r}, v{t}'.format(r=r, t=t, s=sw))
        f(99)
    O = 40
    xl(S, S + 1, ['v_cvt_pk_bf16_f32 v%d, v%d, v%d' % (O + d, AC3 + 2 * d, AC3 + 2 * d + 1) for d in range(8)] +
       ['buffer_store_dwordx4 %s, v%d, %s, s26 offen%s' % (vr(O, 4), vX, WS, C.st),
        'buffer_store_dwordx4 %s, v%d, %s, s26 offen offset:1024%s' % (vr(O + 4, 4), vB, WS, C.st)])
    A.e('v_mul_f32 v%d, %s, v%d' % (S, f32(1 / 448.), S))
    for i in range(16):
        A.e('v_sub_f32 v%d, v%d, v%d' % (AC3 + i, AC3 + i, S))
    A.e('v_mul_f32 v%d, v%d, v%d\nv_mul_f32 v%d, v%d, v%d' % (S, AC3, AC3, S + 1, AC3 + 1, AC3 + 1))
    for i in range(2, 16):
        if i == 8:
            A.e('s_mov_b32 exec_hi, 0xffff')
        A.e('v_fmac_f32 v%d, v%d, v%d' % (S + i % 2, AC3 + i, AC3 + i))
    A.e('s_mov_b32 exec_hi, -1\nv_add_f32 v%d, v%d, v%d' % (S, S, S + 1))
    xl(S, S + 1, ['v_mul_f32 v%d, v%d, v%d' % (AC3 + i, AC3 + i, mod(2, i)) for i in range(16)])
    A.e('''
v_mov_b32 v{t}, {eps}
v_fmac_f32 v{t}, {inv}, v{s}
v_rsq_f32 v{t}, v{t}
'''.format(t=S + 1, s=S, eps=f32(1e-5), inv=f32(1 / 448.)))
    for i in range(16):
        A.e('v_fma_f32 v%d, v%d, v%d, v%d' % (AC3 + i, AC3 + i, S + 1, mod(1, i)))
    O = 48
    for d in range(8):
        A.e('v_cvt_pk_bf16_f32 v%d, v%d, v%d' % (O + d, AC3 + 2 * d, AC3 + 2 * d + 1))
    A.e('buffer_store_dwordx4 %s, v%d, %s, s27 offen%s' % (vr(O, 4), vX, WS, C.st))
    A.e('buffer_store_dwordx4 %s, v%d, %s, s27 offen offset:1024%s' % (vr(O + 4, 4), vB, WS, C.st))
    A.e('s_cmp_lg_u32 s%d, 0\ns_cbranch_scc1 L3_e0' % sDONE)
    for t in pre4:
        A.e(t)
    A.e('s_waitcnt vmcnt(16)\ns_branch L3_e1\nL3_e0:\ns_waitcnt vmcnt(0)\nL3_e1:')
    flag(A, C, 25)
    stamp(A, C, 2)
    A.e('s_cmp_ge_u32 s2, 224\ns_cbranch_scc1 L2_fin')
    P.ext(fix_hazards(A.ins))


def poll(P, C, name, soff, need, between=None):
    P.e('s_mov_b32 s53, 0')
    P.e('buffer_load_dword v0, v%d, %s, s%d offen%s' % (vPOLL, WS, soff, C.ld))
    if between:
        between()
    P.e('s_waitcnt vmcnt(0)')
    P.e('''
s_branch {n}_chk
{n}_poll:
s_sleep {sl}
s_add_u32 s53, s53, 1
s_cmp_ge_u32 s53, {lim}
s_cbranch_scc1 {n}_go
buffer_load_dword v0, v{p}, {ws}, s{o} offen{ld}
s_waitcnt vmcnt(0)
{n}_chk:
v_cmp_eq_u32 vcc, 0, v0
s_nop 0
s_and_b32 s50, vcc_lo, {need}
s_cbranch_scc1 {n}_poll
{n}_go:
'''.format(n=name, sl=C.sleep, lim=SPIN, p=vPOLL, ws=WS, o=soff, ld=C.ld, need=need))


class Temps:
    def __init__(self):
        self.n = [0, 0]

    def __call__(self, k):
        self.n[k] += 1
        return (sT, sT2)[k][self.n[k] % 4]


TILE4, STAGE4 = 16640, 33280
SL4 = [68096, 101376, 0, 33280]
IMM4 = {(0, 0): 0, (0, 1): 1024, (1, 0): 2080, (1, 1): 3104}
sM4, sH4, sO4, sP4, sF4 = 12, 13, 14, 17, 18
vR4, vG4, vG4E = [1, 2], 3, 12
MAP4 = '''
s_and_b32 s{a}, s2, 7
s_lshr_b32 s{b}, s2, 3
s_mul_i32 s{r}, s{b}, 9363
s_lshr_b32 s{r}, s{r}, 16
s_mul_i32 s{c}, s{r}, 7
s_sub_u32 s{c}, s{b}, s{c}
s_lshr_b32 s{b}, s{a}, 1
s_lshl_b32 s{b}, s{b}, 2
s_add_u32 s{r}, s{r}, s{b}
s_and_b32 s{b}, s{a}, 1
s_mul_i32 s{b}, s{b}, 7
s_add_u32 s{c}, s{c}, s{b}
'''


def g4_addr(d, t):
    return ['v_lshrrev_b32 v%d, 8, v%d' % (t, vX), 'v_lshl_add_u32 v%d, v%d, 3, s48' % (t, t), 'v_mul_u32_u24 v%d, 3584, v%d' % (d, t),
            'v_and_b32 v%d, 0xf0, v%d' % (t, vX), 'v_add_u32 v%d, v%d, v%d' % (d, d, t)]


def setup4(P):
    P.e('s_load_dwordx2 s[4:5], s[0:1], 88')
    for t in g4_addr(vG4, 4):
        P.e(t)
    P.e(MAP4.format(a=40, b=41, r=42, c=43))
    P.e('''
s_lshl_b32 s44, s42, 2
s_add_u32 s44, s44, s48
s_mul_i32 s13, s44, 28672
s_add_u32 s13, s13, {h2}
s_add_u32 s16, s13, 14336
s_mul_i32 s14, s44, 114688
s_lshl_b32 s45, s43, 12
s_add_u32 s14, s14, s45
s_add_u32 s14, s14, {hh}
s_add_u32 s15, s14, 57344
s_lshl_b32 s17, s44, 7
s_add_u32 s17, s17, {fl3}
s_lshl_b32 s18, s44, 6
s_lshl_b32 s45, s43, 2
s_add_u32 s18, s18, s45
s_add_u32 s18, s18, {fl4}
s_mul_i32 s12, s48, 4160
v_lshrrev_b32 v4, 8, v8
v_bfe_u32 v5, v8, 6, 2
v_mul_u32_u24 v2, 4160, v5
v_and_b32 v5, 1, v4
v_mul_u32_u24 v5, 2080, v5
v_add_u32 v2, v2, v5
v_lshrrev_b32 v5, 1, v4
v_lshl_add_u32 v2, v5, 8, v2
v_bfe_u32 v5, v8, 4, 2
v_lshl_add_u32 v2, v5, 3, v2
v_add_u32 v1, {sl0}, v2
s_waitcnt lgkmcnt(0)
s_mov_b32 s6, {act}
s_mov_b32 s7, 0x20000
'''.format(h2=WS_H2, hh=WS_HH, fl3=WS_FLG + 0x4000, fl4=WS_FLG + 0x8000, sl0=SL4[0], act=ACT))


def dma4(j, st, sm=sM4, vg=vG4):
    L = []
    for kt in range(2):
        for n, (b, mat) in enumerate(sorted(IMM4)):
            sc = []
            if n == 0:
                sc.append('s_add_u32 m0, s%d, %d' % (sm, SL4[j % 4] + kt * TILE4))
            t = st(0)
            sc.append('s_mov_b32 s%d, %d' % (t, (64 * j + 32 * kt + 4 * b) * 3584 - IMM4[(b, mat)] + 4096))
            L.append((sc, 'buffer_load_dwordx4 v%d, %s, s%d offen offset:%d lds' % (vg, sr((60, 64)[mat], 4), t, IMM4[(b, mat)])))
    return L


def preload4(C, js):
    st = Temps()
    return [t for j in js for sc, d in dma4(j, st) for t in sc + [d]]


def reads4(j):
    L = []
    f = 0
    for cb in range(8):
        for mat in range(2):
            for kt in range(2):
                for u in range(2):
                    off = (j & 1) * STAGE4 + kt * TILE4 + mat * 1024 + u * 512 + cb * 32
                    L.append('ds_read_b64_tr_b16 %s, v%d offset:%d' % (ar((j & 1) * 128 + 4 * f + 2 * u, 2), vR4[(j >> 1) & 1], off))
                f += 1
    return L


vA5, vG5, vPO, vOUT, vLW, vLR = 4, 9, 12, 13, 14, 0
sM5, sH5, sA5, sX5, sO5, sG5, sP5, sN5 = 92, 93, 94, 95, 96, 97, 98, 99
REG5 = [134656, SL4[3], SL4[3] + 16384, SL4[0], SL4[0] + 16384, SL4[1], SL4[1] + 16384, SL4[2], SL4[2] + 16384]
GRP5 = [134656, 0, 0, SL4[0], SL4[0], SL4[0], SL4[0], 0, 0]
NS, NF = 9, 5


def setup5(P, C):
    P.e('''
s_and_b32 s40, s2, 7
s_lshr_b32 s41, s2, 3
s_mul_i32 s42, s41, 9363
s_lshr_b32 s42, s42, 16
s_mul_i32 s43, s42, 7
s_sub_u32 s43, s41, s43
s_lshl_b32 s44, s40, 2
s_add_u32 s42, s42, s44
s_mul_i32 s93, s42, {rb4}
s_mul_i32 s44, s48, 14336
s_add_u32 s93, s93, s44
s_add_u32 s93, s93, {hh}
s_mul_i32 s94, s48, {wdw}
s_lshl_b32 s45, s43, 7
s_add_u32 s94, s94, s45
s_lshl_b32 s92, s48, 12
s_lshl_b32 s46, s42, 2
s_add_u32 s46, s46, s48
s_mul_i32 s46, s46, 14336
s_add_u32 s96, s46, s45
s_lshl_b32 s47, s43, 8
s_add_u32 s95, s46, s47
s_add_u32 s95, s95, {x1}
s_add_u32 s97, s47, {gb}
s_lshl_b32 s98, s42, 7
s_add_u32 s98, s98, {fl4}
s_mul_i32 s99, s48, 7
s_lshr_b32 s99, s99, 1
s_lshl_b32 s99, 0xf000f, s99
s_add_u32 s44, s92, {g0}
v_lshrrev_b32 v12, 8, v8
v_lshrrev_b32 v13, 7, v8
v_mul_u32_u24 v9, 896, v13
v_bfe_u32 v13, v8, 4, 3
v_lshlrev_b32 v14, 1, v12
v_xor_b32 v13, v13, v14
v_lshl_add_u32 v9, v13, 4, v9
v_lshrrev_b32 v13, 6, v8
v_lshlrev_b32 v4, 7, v13
v_bfe_u32 v13, v13, 1, 2
v_lshl_add_u32 v4, v13, 5, v4
v_bfe_u32 v13, v8, 4, 2
v_lshl_add_u32 v4, v13, 3, v4
v_add_u32 v4, s44, v4
v_xor_b32 v5, 32, v4
v_xor_b32 v6, 64, v4
v_xor_b32 v7, 0x60, v4
v_bfe_u32 v13, v8, 4, 4
v_mul_u32_u24 v13, 896, v13
v_and_b32 v14, 1, v12
v_lshl_add_u32 v13, v14, 5, v13
v_lshrrev_b32 v14, 1, v12
v_lshl_add_u32 v13, v14, 4, v13
v_lshlrev_b32 v12, 5, v12
v_add_u32 v14, s92, v8
'''.format(rb4=4 * 57344, hh=WS_HH, wdw=448 * 896, x1=WS_X1, gb=WS_MOD + 3 * 1792, fl4=WS_FLG + 0x8000, g0=GRP5[0]))


def dma5(k, st):
    L = []
    for j in range(4):
        sc = []
        if j == 0:
            sc.append('s_add_u32 m0, s%d, %d' % (sM5, REG5[k % NS]))
        t = st(1)
        sc.append('s_add_u32 s%d, s%d, %d' % (t, sA5, (32 * k + 8 * j) * 896 - 1024 * j))
        L.append((sc, 'buffer_load_dwordx4 v%d, s[68:71], s%d offen offset:%d lds' % (vG5, t, 1024 * j)))
    return L


def frag5(k, cb):
    if k < NF + 2:
        return 16 + 16 * k + 4 * cb
    return 16 + 16 * (k - NF - 2) + 4 * cb


def reads5(k):
    U = []
    d = GRP5[k % NS] - GRP5[(k - 1) % NS] if k else 0
    if d:
        U = [('v_add_u32 v%d, %d, v%d' if d > 0 else 'v_subrev_u32 v%d, %d, v%d') % (vA5 + cb, abs(d), vA5 + cb) for cb in range(4)]
    return U, ['ds_read_b64_tr_b16 %s, v%d offset:%d' % (vr(frag5(k, cb) + 2 * u, 2), vA5 + cb, REG5[k % NS] - GRP5[k % NS] + u * 2048)
               for cb in range(4) for u in range(2)]


def s4(P, C):
    HB, ACC = 16, 128
    st = Temps()

    def hload(j):
        return ['buffer_load_dwordx4 %s, v%d, %s, s%d offen offset:%d%s' % (vr(HB + (ks * 2 + rb) * 4, 4), vRP, WS, (13, 16)[rb], ks * 128, C.ld4)
                for ks in (2 * j, 2 * j + 1) for rb in range(2)]
    acc = lambda mat, cb, rb: ACC + mat * 64 + (cb >> 1) * 16 + rb * 8 + (cb & 1) * 4
    ops = []

    def op(text, tag=None, **kw):
        ops.append(Op(Ins(text, tag), **kw))
    bar = lambda j: 64 * j + C.BOFF
    stream = [('h', 2, 0), ('d', 4, bar(0) + 2), ('h', 3, 0), ('d', 5, bar(0) + 2), ('h', 4, 0), ('d', 6, bar(1) + 2), ('h', 5, 0), ('w', 0, 0), ('h', 6, 0),
              ('w', 1, bar(2) + 2), ('w', 2, bar(2) + 2), ('w', 3, bar(3) + 2), ('w', 4, bar(3) + 2), ('w', 5, bar(4) + 2), ('w', 6, bar(4) + 2),
              ('w', 7, bar(5) + 2), ('w', 8, bar(5) + 2)]
    tg = 1
    for kind, j, lo in stream:
        tg = max(tg, lo)
        L = [([], d) for d in hload(j)] if kind == 'h' else dma4(j, st) if kind == 'd' else dma5(j, st)
        for sc, d in L:
            for s in sc:
                op(s, tgt=tg - 2, lo=max(0, tg - 6))
            op(d, tag='%s%d' % (kind, j), tgt=tg, lo=lo, early=False)
            tg += C.WSTEP if kind == 'w' else C.HSTEP4
    for j in range(7):
        b0 = 64 * j
        order = [(cb, mat, rb, kt) for cb in range(8) for mat in range(2) for rb in range(2) for kt in range(2)]
        if j >= 2:
            wlo = bar(j - 2) + 2
            for n, t in enumerate(reads4(j)):
                op(t, tgt=wlo + n * 56 // 64, lo=wlo, hi=bar(j - 1) - 3, early=False)
        for m, (cb, mat, rb, kt) in enumerate(order):
            d = vr(acc(mat, cb, rb), 4)
            op('%s %s, %s, %s, %s' % (MF, d, ar((j & 1) * 128 + 4 * (cb * 4 + mat * 2 + kt), 4), vr(HB + ((2 * j + kt) * 2 + rb) * 4, 4),
                                      '0' if j == 0 and kt == 0 else d), gap=b0 + m)
        if j <= 5:
            op('s_waitcnt lgkmcnt(0)' + (' vmcnt(@d%d)' % (j + 2) if 2 <= j <= 4 else ''), gap=bar(j))
            op('s_barrier', gap=bar(j) + 1)
    for e in range(4):
        for rb in range(2):
            r = acc(0, 2 * e, rb)
            for i in range(8):
                op('v_mul_f32 v%d, v%d, v%d' % (r + i, r + i, r + 64 + i), tgt=0)
            for i in range(4):
                op('v_cvt_pk_bf16_f32 v%d, v%d, v%d' % (r + i, r + 2 * i, r + 2 * i + 1), tgt=0)
            op('buffer_store_dwordx4 %s, v%d, %s, s%d offen offset:%d%s' % (vr(r, 4), vX, WS, sO4 + rb, e * 1024, C.st4), tgt=0)
    logical = list(ops)
    pre, gaps, post = schedule(ops, 448, 's4')
    assert not pre
    verify(logical, pre + flatten(gaps) + post)
    if C.verbose:
        print(' '.join(''.join(o.cls for o in sc + vec) or '.' for m, sc, vec in gaps), file=sys.stderr)
    Q = Prog()

    def between():
        Q.e('s_barrier')
        for t in reads4(0) + reads4(1):
            Q.e(t)
        setup5(Q, C)
        if C.wpf:
            Q.e('''
s_lshr_b32 s40, s2, 3
s_lshl_b32 s40, s40, 2
s_add_u32 s40, s40, s48
s_mul_i32 s40, s40, 14336
s_add_u32 s41, s40, 8192
v_lshlrev_b32 v127, 3, v8
''')
    poll(Q, C, 'L4', sP4, '0xffff', between)
    R = Prog()
    R.e('; ST3')
    for j in range(2):
        for d in hload(j):
            R.e(d)
    if C.wpf:
        R.e('buffer_load_dword v126, v127, s[68:71], s40 offen\nbuffer_load_dword v125, v127, s[68:71], s41 offen')
    R.e('s_waitcnt lgkmcnt(0)')
    R.ext([o.ins for o in flatten(gaps)])
    R.ext([o.ins for o in post])
    R.e('s_waitcnt vmcnt(@w6)')
    for k in range(NF + 2):
        U, RR = reads5(k)
        for t in U + RR:
            R.e(t)
    seq, _, _ = add_waits(R.ins)
    print('s4: model cycles %d' % model_cycles(seq), file=sys.stderr)
    P.ext(fix_hazards(Q.ins + seq))


def s5(P, C):
    ACC = 128
    XR, GB = 192, 200
    st = Temps()

    def hl(k):
        L = []
        for rb in range(4):
            t = st(0)
            L.append((['s_add_u32 s%d, s%d, %d' % (t, sH5, rb * 57344 + (k & ~3) * 1024)],
                      'buffer_load_dwordx4 %s, v%d, %s, s%d offen offset:%d%s' % (ar((k * 4 + rb) * 4, 4), vX, WS, t, (k & 3) * 1024, C.ld5)))
        return L
    ops = []

    def op(text, tag=None, **kw):
        ops.append(Op(Ins(text, tag), **kw))
    hpre = [x for k in range(C.HPRE5) for x in hl(k)]
    tg = 1
    for k in range(C.HPRE5, 14):
        for sc, d in hl(k):
            for s in sc:
                op(s, tgt=tg - 2, lo=max(0, tg - 6))
            op(d, tgt=tg, lo=0, early=False)
            tg += C.HSTEP5
    for e in range(2):
        op('buffer_load_dwordx4 %s, v%d, %s, s%d offen offset:%d%s' % (vr(XR + 4 * e, 4), vRP, WS, sX5, 128 * e, C.ld), tgt=tg, lo=0, early=False)
        tg += 2
    op('s_mul_i32 s50, s48, %d' % (16384 + 256), tgt=150, lo=100)
    op('s_andn2_b32 s50, s50, 256', tgt=152, lo=100)
    op('v_add_u32 v%d, s50, v%d' % (vLR, vX), tgt=160, lo=100)
    acc = lambda rb, cb: ACC + rb * 16 + cb * 4
    for k in range(14):
        if k >= NF + 2:
            U, R = reads5(k)
            for n, t in enumerate(U + R):
                op(t, tgt=16 * (k - NF - 2) + 4 + n, lo=0)
        m = 0
        for cb in range(4):
            for rb in range(4):
                d = vr(acc(rb, cb), 4)
                op('%s %s, %s, %s, %s' % (MF, d, vr(frag5(k, cb), 4), ar((k * 4 + rb) * 4, 4), d if k else '0'), gap=16 * k + m)
                m += 1
    logical = list(ops)
    pre, gaps, post = schedule(ops, 224, 's5')
    assert not pre
    verify(logical, pre + flatten(gaps) + post)
    if C.verbose:
        print(' '.join(''.join(o.cls for o in sc + vec) or '.' for m, sc, vec in gaps), file=sys.stderr)
    Q = Prog()
    Q.e('s_waitcnt vmcnt(0) lgkmcnt(0)')
    flag(Q, C, sF4)
    stamp(Q, C, 4)
    for k in range(NS, 14):
        for sc, d in dma5(k, st):
            for s in sc:
                Q.e(s)
            Q.e(d)
    for e in range(2):
        for i in range(2):
            Q.e('buffer_load_dwordx4 %s, v%d, %s, s%d offen offset:%d' % (vr(GB + 8 * e + 4 * i, 4), vPO, WS, sG5, 128 * e + 16 * i))
    poll(Q, C, 'L5', sP5, 's%d' % sN5)
    R = Prog()
    R.e('; ST5')
    for sc, d in hpre:
        for s in sc:
            R.e(s)
        R.e(d)
    R.e('s_waitcnt lgkmcnt(0)')
    R.ext([o.ins for o in flatten(gaps)])
    R.ext([o.ins for o in post])
    for rb in range(4):
        for cb in range(4):
            R.e('ds_write_b128 v%d, %s offset:%d' % (vLW, vr(acc(rb, cb), 4), rb * 16384 + (rb >> 1) * 512 + cb * 1024))
    R.e('s_waitcnt lgkmcnt(0)\ns_barrier')
    for w in range(4):
        for cb in range(4):
            R.e('ds_read_b128 %s, v%d offset:%d' % (vr(acc(w, cb), 4), vLR, w * 4096 + cb * 1024))
    for w in range(1, 4):
        for i in range(16):
            R.e('v_add_f32 v%d, v%d, v%d' % (ACC + i, ACC + i, ACC + 16 * w + i))
    T = ACC + 16
    for d in range(8):
        R.e('v_lshlrev_b32 v%d, 16, v%d\nv_and_b32 v%d, 0xffff0000, v%d' % (T + 2 * d, XR + d, T + 2 * d + 1, XR + d))
    for i in range(16):
        R.e('v_fma_f32 v%d, v%d, v%d, v%d' % (ACC + i, ACC + i, GB + i, T + i))
    for d in range(8):
        R.e('v_cvt_pk_bf16_f32 v%d, v%d, v%d' % (T + d, ACC + 2 * d, ACC + 2 * d + 1))
    for e in range(2):
        for i in range(2):
            R.e('v_permlane16_swap_b32 v%d, v%d' % (T + 4 * e + i, T + 4 * e + 2 + i))
    for e in range(2):
        R.e('buffer_store_dwordx4 %s, v%d, s[4:7], s%d offen offset:%d' % (vr(T + 4 * e, 4), vOUT, sO5, 64 * e))
    seq, _, _ = add_waits(R.ins)
    print('s5: model cycles %d' % model_cycles(seq), file=sys.stderr)
    P.ext(fix_hazards(Q.ins + seq))


def put_stamps(P, C):
    out = []
    n = 0

    def mt(key):
        if C.stamps and key in C.mt:
            k = C.mt.index(key)
            out.append(Ins('s_memtime s[%d:%d]' % (82 + 2 * k, 83 + 2 * k)))
    for x in P.ins:
        if x.text.startswith('; ST'):
            if C.stamps:
                k = int(x.text[4:])
                out.append(Ins('s_memrealtime s[%d:%d]' % (ST0 + 2 * k, ST0 + 2 * k + 1)))
                mt({3: -1, 5: -3}[k])
            continue
        out.append(x)
        if x.text.startswith('s_memrealtime s[36'):
            mt(-2)
        if x.kind == 'mfma':
            mt(n)
            n += 1
    mt(-4)
    P.ins = out


def tail(C):
    P = Prog()
    s3(P, C, preload4(C, (2, 3)), setup4, preload4(C, (0, 1)))
    s4(P, C)
    s5(P, C)
    put_stamps(P, C)
    return P
```
